```python
import torch

def _softmax(x, axis=-1):
    return torch.softmax(x, dim=axis)
def _gelu(x):
    return torch.nn.functional.gelu(x, approximate="tanh")
def _silu(x):
    return torch.nn.functional.silu(x)
def _sigmoid(x):
    return torch.sigmoid(x)
def _layernorm(x, axis=-1, eps=1e-5):
    m = x.mean(dim=axis, keepdim=True)
    v = x.var(dim=axis, keepdim=True, unbiased=False)
    return (x - m) / torch.sqrt(v + eps)
def _scatter_add(tgt, idx, src, axis=0):
    return tgt.clone().index_add_(axis, idx, src)
def _segment_sum(src, seg, n):
    out = torch.zeros((n,) + src.shape[1:], dtype=src.dtype)
    return out.index_add_(0, seg, src)
def _pad(x, pw):
    flat = tuple(v for pair in reversed(pw) for v in pair)
    return torch.nn.functional.pad(x, flat)

kernel_name = 'parallel_sum__ssm_conv_h3__dense_activation_mish__prompt'

def setup_inputs():

    _w = (lambda a: (lambda t: t.to(torch.bfloat16) if t.is_floating_point() else t)(torch.as_tensor(a)))
    def _A_setup():
        B, S, D = 1, 2048, 448
        ks = 4
        return {
            "q": _w((lambda *s: torch.randn(*s, dtype=torch.bfloat16) * 0.05)(B, S, D)),
            "k": _w((lambda *s: torch.randn(*s, dtype=torch.bfloat16) * 0.2)(B, S, D)),
            "v": _w((lambda *s: torch.randn(*s, dtype=torch.bfloat16) * 0.2)(B, S, D)),
            "shift_k": _w((lambda *s: torch.randn(*s, dtype=torch.bfloat16) * 0.2)(D, ks) * 0.5),
            "ssm_k": _w((lambda *s: torch.randn(*s, dtype=torch.bfloat16) * 0.8)(D, S) * (1.0 / S ** 0.5)),
            "ssm_D": _w((lambda *s: torch.randn(*s, dtype=torch.bfloat16) * 0.2)(D)),
        }
    _A_in = _A_setup()

    def _B_setup():
        B, S, D, F = 1, 2048, 448, 1792
        return {
            "x": _w((lambda *s: torch.randn(*s, dtype=torch.bfloat16) * 0.05)(B, S, D)),
            "w1": _w((lambda *s: torch.randn(*s, dtype=torch.bfloat16) * 0.8)(D, F) * (D ** -0.5)),
            "b1": _w((lambda *s: torch.randn(*s, dtype=torch.bfloat16) * 0.2)(F)),
            "w2": _w((lambda *s: torch.randn(*s, dtype=torch.bfloat16) * 0.1)(F, D) * (F ** -0.5)),
        }
    _B_in = _B_setup()

    return {
        "A_q": _A_in["q"],
        "A_k": _A_in["k"],
        "A_v": _A_in["v"],
        "A_shift_k": _A_in["shift_k"],
        "A_ssm_k": _A_in["ssm_k"],
        "A_ssm_D": _A_in["ssm_D"],
        "B_x": _B_in["x"],
        "B_w1": _B_in["w1"],
        "B_b1": _B_in["b1"],
        "B_w2": _B_in["w2"],
    }

def reference(A_q, A_k, A_v, A_shift_k, A_ssm_k, A_ssm_D, B_x, B_w1, B_b1, B_w2):
    def _A_ref(q, k, v, shift_k, ssm_k, ssm_D):
        B, S, D = q.shape
        ks = shift_k.shape[-1]
        k_pad = _pad(k, ((0, 0), (ks - 1, 0), (0, 0)))
        k_shift = torch.zeros_like(k)
        for t in range(ks):
            k_shift = k_shift + k_pad[:, t:t + S, :] * shift_k[:, ks - 1 - t][None, None, :]
        kv = k_shift * v
        L = 2 * S
        kv_pad = _pad(kv, ((0, 0), (0, S), (0, 0)))
        kf_pad = _pad(ssm_k, ((0, 0), (0, S)))
        kv_f = (lambda x, axes=(-2,-1): torch.fft.rfft2(x.float(), dim=axes))(kv_pad[:, None, :, :], axes=(1, 2))
        kf_f = (lambda x, axes=(-2,-1): torch.fft.rfft2(x.float(), dim=axes))(kf_pad[:, None, :], axes=(1, 2))
        kf_f = (lambda x, *d: x.permute(*d))(kf_f, 1, 2, 0)
        y_f = kv_f * kf_f[None, :, :, :]
        y = (lambda x, s, axes=(-2,-1): torch.fft.irfft2(x, s=s, dim=axes).to(torch.bfloat16))(y_f, (1, L), axes=(1, 2))[:, 0, :S, :]
        y = y + kv * ssm_D[None, None, :]
        return q * y

    def _B_ref(x, w1, b1, w2):
        h = torch.einsum("bsd,df->bsf", x, w1) + b1
        sp = torch.log1p(torch.exp(-torch.abs(h))) + torch.where(h > 0, h, torch.zeros_like(h))
        act = h * torch.tanh(sp)
        return torch.einsum("bsf,fd->bsd", act, w2)

    x = A_q
    xn = _layernorm(x, axis=-1)
    return x + _A_ref(xn, A_k, A_v, A_shift_k, A_ssm_k, A_ssm_D) + _B_ref(xn, B_w1, B_b1, B_w2)
```

```python
import re

REG_RE = re.compile(r'^(-?|abs\()?([vas])(\d+)\)?$')
RNG_RE = re.compile(r'^-?([vas])\[(\d+):(\d+)\]$')

def regs_of(op):
    op = op.strip()
    if op.startswith('-'): op = op[1:]
    if op.startswith('abs(') and op.endswith(')'): op = op[4:-1]
    if op.startswith('|') and op.endswith('|'): op = op[1:-1]
    m = re.match(r'^([vas])(\d+)$', op)
    if m: return [(m.group(1), int(m.group(2)))]
    m = re.match(r'^([vas])\[(\d+):(\d+)\]$', op)
    if m: return [(m.group(1), i) for i in range(int(m.group(2)), int(m.group(3)) + 1)]
    if op == 'vcc': return [('s', 'vcc')]
    if op == 'exec': return [('s', 'exec')]
    if op == 'm0': return [('s', 'm0')]
    return []

TRANS = ('v_exp_f32', 'v_log_f32', 'v_rcp_f32', 'v_rsq_f32', 'v_sqrt_f32', 'v_sin_f32', 'v_cos_f32')
def mfma_passes(opc):
    if '32x32x16' in opc: return 8
    if '16x16x32' in opc: return 4
    if '4x4x4' in opc: return 2
    raise ValueError(opc)
XDL_RAW = {2: 5, 4: 8, 8: 12, 16: 20}
XDL_C_OVL = {2: 4, 4: 6, 8: 10, 16: 18}
XDL_C_SAME = {2: 2, 4: 0, 8: 0, 16: 0}
XDL_WAR_C = {2: 1, 4: 3, 8: 7, 16: 15}

class Ins:
    __slots__ = ('text', 'opc', 'ops', 'rd', 'wr', 'kind', 'mods')
    def __init__(self, text):
        self.text = text
        t = text.split(';')[0].strip()
        self.rd, self.wr, self.kind, self.opc, self.ops = [], [], 'other', '', []
        if not t or t.endswith(':') or t.startswith('.'):
            self.kind = 'label' if t.endswith(':') else 'dir'
            return
        parts = t.split(None, 1)
        opc = parts[0]; self.opc = opc
        rest = parts[1] if len(parts) > 1 else ''
        ops = [o.strip() for o in re.split(r',(?![^\[]*\])', rest)] if rest else []
        mods = ''
        if ops:
            sp = ops[-1].split(None, 1)
            ops[-1] = sp[0]
            mods = sp[1] if len(sp) > 1 else ''
        self.mods = mods
        self.ops = ops
        R = lambda i: regs_of(ops[i]) if i < len(ops) else []
        allr = lambda a: [r for i in range(a, len(ops)) for r in regs_of(ops[i])]
        if opc.startswith('v_mfma'):
            self.kind = 'mfma'; self.wr = R(0); self.rd = allr(1)
        elif opc.startswith('v_cmp'):
            self.kind = 'valu'; self.wr = R(0); self.rd = allr(1)
            if opc.startswith('v_cmpx'): self.wr = self.wr + [('s', 'exec')]
        elif opc.startswith('v_readfirstlane') or opc.startswith('v_readlane'):
            self.kind = 'readlane'; self.wr = R(0); self.rd = allr(1)
        elif opc.startswith('v_permlane'):
            self.kind = 'permlane'; self.wr = R(0) + R(1); self.rd = R(0) + R(1)
        elif opc.startswith('v_'):
            self.kind = 'trans' if opc in TRANS or opc.replace('_e64', '').replace('_e32', '') in TRANS else 'valu'
            self.wr = R(0); self.rd = allr(1)
            if opc.startswith(('v_fmac', 'v_dot2c', 'v_writelane')): self.rd = self.rd + R(0)
            if '_co_' in opc: self.wr = R(0) + R(1); self.rd = allr(2)
            if 'dpp' in opc or 'row_' in mods or 'quad_perm' in mods: self.kind = 'dpp'; self.rd = self.rd + R(0)
        elif opc.startswith('ds_read') :
            self.kind = 'dsr'; self.wr = R(0); self.rd = allr(1)
        elif opc.startswith('ds_write') or opc.startswith('ds_add'):
            self.kind = 'dsw'; self.rd = allr(0)
        elif opc.startswith(('buffer_load', 'global_load')):
            if 'lds' in mods.split() or '_lds_' in opc:
                self.kind = 'dma'; self.rd = allr(0) + [('s', 'm0')]
            else:
                self.kind = 'vld'; self.wr = R(0); self.rd = allr(1)
        elif opc.startswith(('buffer_store', 'global_store')):
            self.kind = 'vst'; self.rd = allr(0)
        elif opc.startswith(('buffer_atomic', 'global_atomic')):
            self.kind = 'vst'; self.rd = allr(0)
            if 'sc0' in mods.split(): self.wr = R(0)
        elif opc.startswith(('buffer_wbl2', 'buffer_inv')):
            self.kind = 'vst'
        elif opc == 's_nop':
            self.kind = 'nop'
        elif opc.startswith('s_load') or opc.startswith('s_memtime') or opc.startswith('s_memrealtime'):
            self.kind = 'smem'; self.wr = R(0); self.rd = allr(1)
        elif opc.startswith(('s_cbranch', 's_branch', 's_endpgm')):
            self.kind = 'branch'
        elif opc.startswith(('s_cmp', 's_bitcmp')):
            self.kind = 'salu'; self.rd = allr(0)
        elif opc.startswith(('s_waitcnt', 's_barrier', 's_sleep', 's_setprio')):
            self.kind = 'sctl'
        elif opc.startswith('s_'):
            self.kind = 'salu'; self.wr = R(0); self.rd = allr(1)
            if 'saveexec' in opc: self.wr = self.wr + [('s', 'exec')]
        else:
            raise ValueError('unknown instr ' + text)
    def ws(self):
        if self.kind in ('label', 'dir'): return 0
        if self.kind == 'nop': return int(self.ops[0], 0) + 1
        return 1
    def is_valu(self):
        return self.kind in ('valu', 'trans', 'dpp', 'permlane', 'readlane')
    def is_vmem(self):
        return self.kind in ('vld', 'vst', 'dma')

def fix_hazards(lines, insert=True):
    out = []
    pos = 0
    lastw = {}
    lastc = {}
    laststore = {}
    ninserted = 0
    for text in lines:
        I = Ins(text)
        if I.kind in ('label', 'dir'):
            out.append(text); continue
        need = 0
        def req(prodpos, n):
            nonlocal need
            need = max(need, n - (pos - prodpos))
        for idx, r in enumerate(I.rd):
            if r in lastw:
                p, k, passes, tag = lastw[r]
                if k == 'mfma':
                    if I.kind == 'mfma':
                        cregs = regs_of(I.ops[3])
                        if r in cregs and r not in regs_of(I.ops[1]) + regs_of(I.ops[2]):
                            same = tag == (I.ops[3], mfma_passes(I.opc))
                            req(p, XDL_C_SAME[passes] if same else XDL_C_OVL[passes])
                        else:
                            req(p, XDL_RAW[passes])
                    elif I.is_valu() or I.is_vmem() or I.kind in ('dsw', 'dsr'):
                        req(p, XDL_RAW[passes])
                elif k in ('valu', 'trans', 'dpp', 'permlane', 'readlane'):
                    if r[0] in 'va':
                        if I.kind == 'mfma': req(p, 2)
                        if I.kind == 'permlane': req(p, 2)
                        if I.kind == 'dpp': req(p, 2)
                        if I.kind == 'readlane': req(p, 1)
                        if k == 'trans' and I.is_valu() and I.kind != 'trans': req(p, 1)
                        if k == 'trans' and I.kind == 'trans': req(p, 1)
                    else:
                        if I.is_vmem(): req(p, 5)
                        elif I.kind == 'readlane': req(p, 4)
                        elif I.is_valu(): req(p, 2)
                        elif I.kind in ('salu',): req(p, 4)
                        if r == ('s', 'exec') and I.kind == 'mfma': req(p, 4)
                elif k == 'salu' and r == ('s', 'm0') and I.kind == 'dma':
                    req(p, 1)
        for r in I.wr:
            if r in lastw:
                p, k, passes, tag = lastw[r]
                if k == 'mfma':
                    if I.kind == 'mfma':
                        cregs = regs_of(I.ops[3])
                        if r not in cregs: req(p, XDL_C_OVL[passes])
                    else:
                        req(p, XDL_RAW[passes])
            if r in lastc and (I.is_valu()):
                p, passes = lastc[r]; req(p, XDL_WAR_C[passes])
            if r in laststore and I.is_valu():
                req(laststore[r], 2)
            if r in laststore and I.kind in ('vld', 'dsr'):
                req(laststore[r], 1)
        if I.kind == 'mfma' and ('s', 'exec') in lastw and lastw[('s', 'exec')][1] != 'salu':
            req(lastw[('s', 'exec')][0], 4)
        if I.kind == 'dpp' and ('s', 'exec') in lastw and lastw[('s', 'exec')][1] != 'salu':
            req(lastw[('s', 'exec')][0], 5)
        if need > 0:
            if not insert:
                raise RuntimeError('hazard at: ' + text + ' need %d' % need)
            n = need
            while n > 0:
                k = min(n, 16)
                out.append('  s_nop %d' % (k - 1)); pos += k; n -= k
            ninserted += 1
        out.append(text)
        pos += I.ws()
        if I.kind == 'mfma':
            ps = mfma_passes(I.opc)
            for r in I.wr: lastw[r] = (pos, 'mfma', ps, (I.ops[0], ps))
            for r in regs_of(I.ops[3]): lastc[r] = (pos, ps)
        else:
            for r in I.wr:
                lastw[r] = (pos, I.kind, 0, None)
        if I.kind == 'vst' and ('x4' in I.opc or 'x3' in I.opc):
            for r in regs_of(I.ops[0]) + (regs_of(I.ops[1]) if I.opc.startswith('global') else []):
                laststore[r] = pos
        if I.kind == 'dsw' and 'b128' in I.opc:
            pass
    return out, ninserted

def check_loop(body):
    fixed, _ = fix_hazards(body)
    two = fixed + fixed
    fix_hazards(two, insert=False)

class Gen:
    def __init__(self):
        self.lines = []
        self.vm = 0
        self.lg = 0
    def __call__(self, s):
        for l in s.strip('\n').split('\n'):
            l = l.rstrip()
            if not l.strip(): continue
            self.lines.append(l if l.lstrip().startswith(('.', ';')) or l.rstrip().endswith(':') else '  ' + l.strip())
            I = Ins(l)
            if I.is_vmem(): self.vm += 1
            if I.kind in ('dsr', 'dsw'): self.lg += 1
    def vmark(self): return self.vm
    def lmark(self): return self.lg
    def vwait(self, tok):
        n = self.vm - tok
        assert n >= 0
        if n > 63: n = 63;
        self('s_waitcnt vmcnt(%d)' % n)
    def lwait(self, tok):
        n = self.lg - tok
        assert n >= 0
        if n > 15: n = 15
        self('s_waitcnt lgkmcnt(%d)' % n)
    def text(self):
        fixed, n = fix_hazards(self.lines)
        return '\n'.join(fixed) + '\n', n
```

```python
import sys
from asmlib import Gen, fix_hazards, check_loop

NAME = 'parallel_sum__ssm_conv_h3__dense_activation_mish__prompt'
S, D, F = 2048, 448, 1792
NWG = 224
ACT_OFF = 0
UR_OFF = 8 << 20
Z_OFF = 10 << 20
ST_OFF = 12 << 20
FLAG_OFF = 13 << 20
WS_USED = 14 << 20
sW, sM2, sNC, sMT, sNJ = 4, 5, 6, 7, 8
SRD_Q, SRD_K, SRD_V, SRD_W1, SRD_WS, SRD_W2, SRD_H, SRD_OUT = 12, 16, 20, 24, 28, 32, 36, 40
pSK, pDD, pB1, pDBG = 44, 46, 48, 50
sT0, sT1, sT2, sT3, sT4, sT5 = 52, 53, 54, 55, 56, 57
LOG2E = 0x3fb8aa3b
LN2 = 0x3f317218

def srd(n): return 's[%d:%d]' % (n, n + 3)
def vr(a, n=1): return 'v%d' % a if n == 1 else 'v[%d:%d]' % (a, a + n - 1)
def ar(a, n=1): return 'a%d' % a if n == 1 else 'a[%d:%d]' % (a, a + n - 1)

def prologue(g, tag):
    g(f"""
    s_cmp_ge_u32 s2, {NWG}
    s_cbranch_scc1 L_end_{tag}
    s_load_dwordx16 s[64:79], s[0:1], 0
    s_load_dwordx8 s[80:87], s[0:1], 64
    s_load_dwordx2 s[88:89], s[0:1], 96
    v_lshrrev_b32 v2, 6, v0
    v_and_b32 v1, 63, v0
    s_and_b32 s9, s2, 7
    s_lshr_b32 s10, s2, 3
    v_readfirstlane_b32 s{sW}, v2
    s_mul_i32 s11, s10, 37
    s_lshr_b32 s11, s11, 8
    s_mul_i32 s{sNC}, s11, 7
    s_sub_u32 s{sNC}, s10, s{sNC}
    s_lshl_b32 s{sM2}, s9, 2
    s_add_u32 s{sM2}, s{sM2}, s11
    s_lshr_b32 s{sMT}, s{sM2}, 1
    s_lshr_b32 s11, s11, 1
    s_mul_i32 s11, s11, 14
    s_sub_u32 s{sNJ}, s10, s11
    s_waitcnt lgkmcnt(0)
    """)
    def mk(n, lo, size):
        g(f"""
        s_mov_b32 s{n}, s{lo}
        s_mov_b32 s{n+1}, s{lo+1}
        s_mov_b32 s{n+2}, {size}
        s_mov_b32 s{n+3}, 0x00020000
        """)
    mk(SRD_Q, 64, S * D * 2); mk(SRD_K, 66, S * D * 2); mk(SRD_V, 68, S * D * 2)
    mk(SRD_W1, 78, D * F * 2); mk(SRD_WS, 88, WS_USED); mk(SRD_W2, 82, F * D * 2)
    mk(SRD_H, 72, D * S * 2); mk(SRD_OUT, 84, S * D * 2)
    g(f"""
    s_mov_b32 s{pSK}, s70
    s_mov_b32 s{pSK+1}, s71
    s_mov_b32 s{pDD}, s74
    s_mov_b32 s{pDD+1}, s75
    s_mov_b32 s{pB1}, s80
    s_mov_b32 s{pB1+1}, s81
    s_mov_b32 s{pDBG}, s86
    s_mov_b32 s{pDBG+1}, s87
    """)

G1_SLOT = 32768
PK = 131072
PV = PK + 9216
PU = PV + 8192
EX = PU + 8192
ST = EX + 1024
LDS1 = ST + 1024
vXD0, vXD1, vWD = 2, 3, 4
vXR, vWR = 6, 10
vT = 14
vB1 = 32
vACC = 64
vX, vC, vA, vS, vONE = 128, 144, 160, 184, 208
vKP, vVP, vSKP, vSK, vKF, vO, vPK = 160, 170, 178, 180, 210, 230, 246

def phase1_setup(g):
    w = sW
    g(f"""
    v_lshrrev_b32 v{vT}, 3, v1
    v_and_b32 v{vT+1}, 7, v1
    v_lshlrev_b32 v{vT+2}, 4, v{vT+1}
    s_lshl_b32 s{sT0}, s{sM2}, 6
    s_lshl_b32 s{sT1}, s{w}, 4
    s_add_u32 s{sT0}, s{sT0}, s{sT1}
    v_add_u32 v{vT+3}, s{sT0}, v{vT}
    v_mul_u32_u24 v{vT+3}, 896, v{vT+3}
    s_lshl_b32 s{sT1}, s{sNC}, 7
    v_add3_u32 v{vT+3}, v{vT+3}, s{sT1}, v{vT+2}
    """)
    g(f"""
    v_subrev_u32 v{vT+4}, {8*896}, v{vT+3}
    v_add_u32 v{vT+5}, {8*896}, v{vT+3}
    v_add_u32 v{vT+6}, {56*896}, v{vT+3}
    s_lshl_b32 s{sT2}, s{w}, 11
    s_add_u32 m0, s{sT2}, {PK}
    s_nop 0
    buffer_load_dwordx4 v{vT+4}, {srd(SRD_K)}, 0 offen lds
    s_add_u32 m0, s{sT2}, {PK+1024}
    s_nop 0
    buffer_load_dwordx4 v{vT+3}, {srd(SRD_K)}, 0 offen lds
    s_add_u32 m0, s{sT2}, {PV}
    s_nop 0
    buffer_load_dwordx4 v{vT+3}, {srd(SRD_V)}, 0 offen lds
    s_add_u32 m0, s{sT2}, {PV+1024}
    s_nop 0
    buffer_load_dwordx4 v{vT+5}, {srd(SRD_V)}, 0 offen lds
    s_cmp_lg_u32 s{w}, 0
    s_cbranch_scc1 L_skipk8
    s_mov_b32 m0, {PK+8192}
    s_nop 0
    buffer_load_dwordx4 v{vT+6}, {srd(SRD_K)}, 0 offen lds
    L_skipk8:
    """)
    g(f"""
    v_and_b32 v{vT}, 15, v1
    s_lshl_b32 s{sT0}, s{sNC}, 6
    s_lshl_b32 s{sT1}, s{w}, 4
    s_add_u32 s{sT0}, s{sT0}, s{sT1}
    v_add_u32 v{vT}, s{sT0}, v{vT}
    v_lshlrev_b32 v{vT}, 3, v{vT}
    global_load_dwordx2 v[{vSKP}:{vSKP+1}], v{vT}, s[{pSK}:{pSK+1}]
    """)
    tok_pre = g.vmark()
    g(f"""
    v_lshrrev_b32 v{vT}, 3, v1
    v_lshrrev_b32 v{vT+1}, 4, v1
    v_and_b32 v{vT+2}, 7, v1
    s_lshl_b32 s{sT0}, s{sMT}, 7
    s_lshl_b32 s{sT1}, s{w}, 5
    s_add_u32 s{sT0}, s{sT0}, s{sT1}
    v_add_u32 v{vT+3}, s{sT0}, v{vT}
    v_mul_u32_u24 v{vT+3}, 896, v{vT+3}
    v_xor_b32 v{vT+4}, v{vT+2}, v{vT+1}
    v_lshl_add_u32 v{vXD0}, v{vT+4}, 4, v{vT+3}
    v_xor_b32 v{vT+4}, 4, v{vT+4}
    v_lshl_add_u32 v{vXD1}, v{vT+4}, 4, v{vT+3}
    v_add_u32 v{vXD1}, {8*896}, v{vXD1}
    s_lshl_b32 s{sT0}, s{w}, 4
    v_add_u32 v{vT+3}, s{sT0}, v{vT+1}
    v_mul_u32_u24 v{vT+3}, 3584, v{vT+3}
    v_and_b32 v{vT+4}, 15, v1
    v_lshlrev_b32 v{vT+5}, 2, v{vT+1}
    v_xor_b32 v{vT+4}, v{vT+4}, v{vT+5}
    v_lshl_add_u32 v{vT+3}, v{vT+4}, 4, v{vT+3}
    s_lshl_b32 s{sT0}, s{sNJ}, 8
    v_add_u32 v{vWD}, s{sT0}, v{vT+3}
    s_lshl_b32 s58, s{w}, 12
    """)
    return tok_pre

def g1_issue_stage(g, s_stage_x, s_stage_w, s_m0base):
    L = []
    for q in range(4):
        L.append([f's_add_u32 m0, s{s_m0base}, {q*1024}',
                  f's_add_u32 s{sT5}, s{s_stage_x}, {(q >> 1) * 16 * 896}',
                  f'buffer_load_dwordx4 v{vXD0 + (q & 1)}, {srd(SRD_Q)}, s{sT5} offen lds'])
    for q in range(4):
        L.append([f's_add_u32 m0, s{s_m0base}, {16384 + q*1024}',
                  f's_add_u32 s{sT5}, s{s_stage_w}, {q * 4 * 3584}',
                  f'buffer_load_dwordx4 v{vWD}, {srd(SRD_W1)}, s{sT5} offen lds'])
    return L

def phase1(g, fused=False):
    w = sW
    tok_pre = phase1_setup(g)
    toks = []
    for st in range(4):
        g(f"""
        s_mov_b32 s59, {st*128}
        s_mov_b32 s60, {st*64*3584}
        s_add_u32 s61, s58, {st*G1_SLOT}
        """)
        for piece in g1_issue_stage(g, 59, 60, 61):
            g('\n'.join(piece))
        toks.append(g.vmark())
    g(f"""
    v_and_b32 v{vT}, 31, v1
    s_lshl_b32 s{sT0}, s{sNJ}, 7
    s_lshl_b32 s{sT1}, s{w}, 5
    s_add_u32 s{sT0}, s{sT0}, s{sT1}
    v_add_u32 v{vT}, s{sT0}, v{vT}
    v_lshlrev_b32 v{vT}, 1, v{vT}
    global_load_ushort v{vB1}, v{vT}, s[{pB1}:{pB1+1}]
    """)
    tok_b1 = g.vmark()
    g(f"""
    v_and_b32 v{vT}, 31, v1
    v_lshrrev_b32 v{vT+1}, 5, v1
    v_bfe_u32 v{vT+2}, v1, 1, 3
    v_lshlrev_b32 v{vT+3}, 7, v{vT}
    v_add_u32 v{vT+3}, s58, v{vT+3}
    """)
    for ks in range(4):
        g(f"""
        v_or_b32 v{vT+4}, {2*ks}, v{vT+1}
        v_xor_b32 v{vT+4}, v{vT+4}, v{vT+2}
        v_lshl_add_u32 v{vXR+ks}, v{vT+4}, 4, v{vT+3}
        """)
    g(f"""
    v_bfe_u32 v{vT}, v1, 2, 2
    v_lshrrev_b32 v{vT+1}, 5, v1
    v_lshl_add_u32 v{vT+1}, v{vT+1}, 3, v{vT}
    v_lshlrev_b32 v{vT+1}, 8, v{vT+1}
    v_bfe_u32 v{vT+2}, v1, 4, 1
    v_lshlrev_b32 v{vT+2}, 5, v{vT+2}
    v_and_b32 v{vT+3}, 3, v1
    v_lshl_add_u32 v{vT+2}, v{vT+3}, 3, v{vT+2}
    v_add_u32 v{vT+1}, v{vT+1}, v{vT+2}
    v_add_u32 v{vT+1}, 16384, v{vT+1}
    """)
    for t in range(4):
        g(f"""
        s_add_u32 s{sT0}, s{w}, {t}
        s_and_b32 s{sT0}, s{sT0}, 3
        v_xor_b32 v{vT+4}, s{sT0}, v{vT}
        v_lshl_add_u32 v{vWR+t}, v{vT+4}, 6, v{vT+1}
        """)
    for r in list(range(vACC, vACC + 64)) + list(range(vX, vX + 32)) + list(range(vS, vS + 24)):
        g(f'v_mov_b32 v{r}, 0')
    g(f"""
    v_mov_b32 v{vONE}, 0x3f803f80
    v_mov_b32 v{vONE+1}, 0x3f803f80
    """)
    g(f"""
    v_lshrrev_b32 v{vT}, 4, v1
    v_bfe_u32 v{vT+1}, v1, 2, 2
    v_lshl_add_u32 v{vT+1}, v{vT}, 4, v{vT+1}
    v_lshlrev_b32 v{vT+1}, 7, v{vT+1}
    v_and_b32 v{vT+2}, 3, v1
    v_lshl_add_u32 v{vT+1}, v{vT+2}, 3, v{vT+1}
    s_lshl_b32 s{sT0}, s{w}, 5
    v_add_u32 v{vT+1}, s{sT0}, v{vT+1}
    v_add_u32 v{vT+2}, {PK + 4*128}, v{vT+1}
    v_add_u32 v{vT+3}, {PV}, v{vT+1}
    """)
    g.vwait(tok_pre)
    g('s_barrier')
    for i in range(5):
        g(f'ds_read_b64_tr_b16 v[{vKP+2*i}:{vKP+2*i+1}], v{vT+2} offset:{512*i}')
    for i in range(4):
        g(f'ds_read_b64_tr_b16 v[{vVP+2*i}:{vVP+2*i+1}], v{vT+3} offset:{512*i}')
    g(f"""
    v_lshlrev_b32 v{vSK}, 16, v{vSKP}
    v_and_b32 v{vSK+1}, 0xffff0000, v{vSKP}
    v_lshlrev_b32 v{vSK+2}, 16, v{vSKP+1}
    v_and_b32 v{vSK+3}, 0xffff0000, v{vSKP+1}
    s_waitcnt lgkmcnt(4)
    """)
    for i in range(10):
        g(f'v_lshlrev_b32 v{vKF+2*i}, 16, v{vKP+i}')
        g(f'v_and_b32 v{vKF+2*i+1}, 0xffff0000, v{vKP+i}')
    for i in range(16):
        g(f'v_mul_f32 v{vO+i}, v{vSK}, v{vKF+i+4}')
    for j in (1, 2, 3):
        for i in range(16):
            g(f'v_fmac_f32 v{vO+i}, v{vSK+j}, v{vKF+i+4-j}')
    g('s_waitcnt lgkmcnt(0)')
    for i in range(8):
        g(f'v_lshlrev_b32 v{vKF+2*i}, 16, v{vVP+i}')
        g(f'v_and_b32 v{vKF+2*i+1}, 0xffff0000, v{vVP+i}')
    for i in range(16):
        g(f'v_mul_f32 v{vO+i}, v{vO+i}, v{vKF+i}')
    for j in range(8):
        g(f'v_cvt_pk_bf16_f32 v{vPK+j}, v{vO+15-2*j}, v{vO+14-2*j}')
    g(f"""
    v_and_b32 v{vT+1}, 15, v1
    v_lshlrev_b32 v{vT+1}, 7, v{vT+1}
    v_lshlrev_b32 v{vT+2}, 5, v{vT}
    v_sub_u32 v{vT+1}, v{vT+1}, v{vT+2}
    s_lshl_b32 s{sT0}, s{w}, 11
    s_add_u32 s{sT0}, s{sT0}, {PU + 96}
    v_add_u32 v{vT+1}, s{sT0}, v{vT+1}
    ds_write_b128 v{vT+1}, v[{vPK}:{vPK+3}]
    ds_write_b128 v{vT+1}, v[{vPK+4}:{vPK+7}] offset:16
    v_lshlrev_b32 v{vT+2}, 4, v1
    s_sub_u32 s{sT0}, s{sT0}, 96
    v_add_u32 v{vT+2}, s{sT0}, v{vT+2}
    s_waitcnt lgkmcnt(0)
    ds_read_b128 v[{vKF}:{vKF+3}], v{vT+2}
    ds_read_b128 v[{vKF+4}:{vKF+7}], v{vT+2} offset:1024
    v_lshrrev_b32 v{vT+3}, 3, v1
    s_lshl_b32 s{sT0}, s{sNC}, 6
    s_lshl_b32 s{sT1}, s{w}, 4
    s_add_u32 s{sT0}, s{sT0}, s{sT1}
    v_add_u32 v{vT+3}, s{sT0}, v{vT+3}
    v_lshlrev_b32 v{vT+3}, 12, v{vT+3}
    v_and_b32 v{vT+4}, 7, v1
    v_lshl_add_u32 v{vT+3}, v{vT+4}, 4, v{vT+3}
    s_lshl_b32 s{sT0}, s{sM2}, 7
    s_sub_u32 s{sT0}, {UR_OFF + 4096 - 128}, s{sT0}
    v_add_u32 v{vT+3}, s{sT0}, v{vT+3}
    v_add_u32 v{vT+4}, {8*4096}, v{vT+3}
    s_waitcnt lgkmcnt(0)
    """)
    sc = ' sc1' if fused else ''
    g(f'buffer_store_dwordx4 v[{vKF}:{vKF+3}], v{vT+3}, {srd(SRD_WS)}, 0 offen{sc}')
    g(f'buffer_store_dwordx4 v[{vKF+4}:{vKF+7}], v{vT+4}, {srd(SRD_WS)}, 0 offen{sc}')
    tok_u = g.vmark()
    nyoung_base = g.vm
    def reads(ks, part):
        r = []
        if part == 'xc':
            r.append(f'ds_read_b128 v[{vX+4*ks}:{vX+4*ks+3}], v{vXR+ks}')
            r.append(f'ds_read_b64_tr_b16 v[{vC+4*ks}:{vC+4*ks+1}], v{vWR} offset:{ks*4096}')
            r.append(f'ds_read_b64_tr_b16 v[{vC+4*ks+2}:{vC+4*ks+3}], v{vWR} offset:{ks*4096+1024}')
        else:
            for t in (1, 2, 3):
                a = vA + (ks & 1) * 12 + (t - 1) * 4
                r.append(f'ds_read_b64_tr_b16 v[{a}:{a+1}], v{vWR+t} offset:{ks*4096}')
                r.append(f'ds_read_b64_tr_b16 v[{a+2}:{a+3}], v{vWR+t} offset:{ks*4096+1024}')
        return r
    def m4(ks):
        x, c = vX + 4 * ks, vC + 4 * ks
        one = f'v[{vONE}:{vONE+1}]'
        f = lambda i, a, b: f'v_mfma_f32_4x4x4_16b_bf16 v[{vS+4*i}:{vS+4*i+3}], {a}, {b}, v[{vS+4*i}:{vS+4*i+3}]'
        x0, x1, c0, c1 = f'v[{x}:{x+1}]', f'v[{x+2}:{x+3}]', f'v[{c}:{c+1}]', f'v[{c+2}:{c+3}]'
        return [f(0, x0, x0), f(1, x1, x1), f(2, one, x0), f(3, one, x1), f(4, one, c0), f(5, one, c1)]
    def mm(ks, t):
        a = f'v[{vC+4*ks}:{vC+4*ks+3}]' if t == 0 else f'v[{vA+(ks&1)*12+(t-1)*4}:{vA+(ks&1)*12+(t-1)*4+3}]'
        acc = f'v[{vACC+16*t}:{vACC+16*t+15}]'
        return f'v_mfma_f32_32x32x16_bf16 {acc}, {a}, v[{vX+4*ks}:{vX+4*ks+3}], {acc}'
    for st in range(7):
        g.vwait(toks[st])
        g('s_barrier')
        for r in reads(0, 'a'): g(r)
        pend = []
        if st >= 1 and st + 3 <= 6:
            g(f"""
            s_mov_b32 s59, {(st+3)*128}
            s_mov_b32 s60, {(st+3)*64*3584}
            s_add_u32 s61, s58, {((st+3) & 3)*G1_SLOT}
            """)
            pend = g1_issue_stage(g, 59, 60, 61)
        if st >= 1:
            for m in m4(0): g(m)
        for r in reads(0, 'xc'): g(r)
        tk = g.lmark()
        if st >= 1:
            for ks in (1, 2, 3):
                for m in m4(ks): g(m)
                if pend: g('\n'.join(pend.pop(0)))
        for ks in range(4):
            nxt = (reads(ks + 1, 'xc') + reads(ks + 1, 'a')) if ks < 3 else []
            g.lwait(tk)
            chunks = [nxt[0:3], nxt[3:5], nxt[5:7], nxt[7:9]]
            for t in range(4):
                g(mm(ks, t))
                for r in chunks[t]: g(r)
                if t == 3 and pend: g('\n'.join(pend.pop(0)))
                if t == 1 and pend: g('\n'.join(pend.pop(0)))
            tk = g.lmark()
        while pend: g('\n'.join(pend.pop(0)))
        if st >= 1 and st + 3 <= 6: toks.append(g.vmark())
        if st < 6:
            d = G1_SLOT if ((st + 1) & 3) else -3 * G1_SLOT
            for r in list(range(vXR, vXR + 4)) + list(range(vWR, vWR + 4)):
                g(f'v_add_u32 v{r}, {d & 0xffffffff:#x}, v{r}')
    for ks in range(4):
        for m in m4(ks): g(m)
    t0 = vT
    g(f"""
    v_and_b32 v{t0}, 3, v1
    v_cmp_eq_u32 s[62:63], 1, v{t0}
    v_cmp_eq_u32 s[64:65], 2, v{t0}
    v_cmp_eq_u32 s[66:67], 3, v{t0}
    """)
    for r in range(4):
        g(f'v_add_f32 v{vS+r}, v{vS+r}, v{vS+4+r}')
    g(f"""
    v_add_f32 v{vS+8}, v{vS+8}, v{vS+12}
    v_add_f32 v{vS+16}, v{vS+16}, v{vS+20}
    v_cndmask_b32 v{vS}, v{vS}, v{vS+1}, s[62:63]
    v_cndmask_b32 v{vS}, v{vS}, v{vS+2}, s[64:65]
    v_cndmask_b32 v{vS}, v{vS}, v{vS+3}, s[66:67]
    v_mov_b32 v{vS+1}, v{vS}
    v_mov_b32 v{vS+9}, v{vS+8}
    v_mov_b32 v{vS+17}, v{vS+16}
    v_permlane32_swap_b32 v{vS}, v{vS+1}
    v_permlane32_swap_b32 v{vS+8}, v{vS+9}
    v_permlane32_swap_b32 v{vS+16}, v{vS+17}
    v_add_f32 v{vS}, v{vS}, v{vS+1}
    v_add_f32 v{vS+8}, v{vS+8}, v{vS+9}
    v_add_f32 v{vS+16}, v{vS+16}, v{vS+17}
    s_mov_b32 s{sT0}, 0x3b124925
    v_mul_f32 v{vS+8}, s{sT0}, v{vS+8}
    v_mul_f32 v{vS}, s{sT0}, v{vS}
    v_fma_f32 v{vS}, -v{vS+8}, v{vS+8}, v{vS}
    v_max_f32 v{vS}, 0, v{vS}
    v_cvt_pk_bf16_f32 v{vS+1}, v{vS}, v{vS}
    v_and_b32 v{vS+1}, 0xffff0000, v{vS+1}
    v_add_f32 v{vS+1}, 0x3727c5ac, v{vS+1}
    v_cvt_pk_bf16_f32 v{vS+1}, v{vS+1}, v{vS+1}
    v_and_b32 v{vS+1}, 0xffff0000, v{vS+1}
    v_sqrt_f32 v{vS+1}, v{vS+1}
    v_cvt_pk_bf16_f32 v{vS+9}, v{vS+8}, v{vS+8}
    v_cvt_pk_bf16_f32 v{vS+1}, v{vS+1}, v{vS+1}
    v_and_b32 v{vS+2}, 0xffff0000, v{vS+1}
    v_rcp_f32 v{vS+3}, v{vS+2}
    v_and_b32 v{vS+10}, 0xffff0000, v{vS+9}
    """)
    g(f"""
    v_cmp_gt_u32 s[62:63], 32, v1
    v_xor_b32 v{vS+9}, 0x80008000, v{vS+9}
    v_and_b32 v{vS+1}, 0xffff, v{vS+1}
    v_mov_b32 v{vX+2}, 0
    v_mov_b32 v{vX+3}, 0
    v_cndmask_b32 v{vX}, 0, v{vS+9}, s[62:63]
    v_cndmask_b32 v{vX+1}, 0, v{vS+1}, s[62:63]
    """)
    g(f"""
    v_and_b32 v{t0}, 31, v1
    s_lshl_b32 s{sT0}, s{w}, 5
    v_add_u32 v{t0}, s{sT0}, v{t0}
    v_lshlrev_b32 v{t0+1}, 3, v{t0}
    v_mov_b32 v{t0+2}, v{vS+10}
    v_mov_b32 v{t0+3}, v{vS+3}
    """)
    assert (t0 + 2) % 2 == 0
    if fused:
        g(f'v_add_u32 v{t0+1}, {ST}, v{t0+1}')
        g(f'ds_write_b64 v{t0+1}, v[{t0+2}:{t0+3}]')
    else:
        g(f"""
        s_lshl_b32 s{sT0}, s{sMT}, 10
        s_add_u32 s{sT0}, s{sT0}, {ST_OFF}
        buffer_store_dwordx2 v[{t0+2}:{t0+3}], v{t0+1}, {srd(SRD_WS)}, s{sT0} offen
        """)
    g.vwait(tok_b1)
    g(f"""
    v_cvt_pk_bf16_f32 v{vS+17}, v{vS+16}, v{vS+16}
    v_and_b32 v{vS+18}, 0xffff0000, v{vS+17}
    v_sub_f32 v{vS+18}, v{vS+16}, v{vS+18}
    v_cvt_pk_bf16_f32 v{vC}, v{vS+16}, v{vS+18}
    v_mov_b32 v{vC+1}, v{vB1}
    v_and_b32 v{t0}, 31, v1
    v_lshlrev_b32 v{t0}, 3, v{t0}
    s_lshl_b32 s{sT0}, s{w}, 8
    s_add_u32 s{sT0}, s{sT0}, {EX}
    v_add_u32 v{t0+1}, s{sT0}, v{t0}
    ds_write_b64 v{t0+1}, v[{vC}:{vC+1}]
    s_waitcnt lgkmcnt(0)
    s_barrier
    """)
    for t in (1, 2, 3):
        g(f"""
        s_add_u32 s{sT0}, s{w}, {t}
        s_and_b32 s{sT0}, s{sT0}, 3
        s_lshl_b32 s{sT0}, s{sT0}, 8
        s_add_u32 s{sT0}, s{sT0}, {EX}
        v_add_u32 v{t0+1}, s{sT0}, v{t0}
        ds_read_b64 v[{vC+4*t}:{vC+4*t+1}], v{t0+1}
        """)
    for t in range(4):
        g(f'v_mov_b32 v{vC+4*t+2}, 0')
        g(f'v_mov_b32 v{vC+4*t+3}, 0')
    g('s_waitcnt lgkmcnt(0)')
    for t in range(4):
        acc = f'v[{vACC+16*t}:{vACC+16*t+15}]'
        g(f'v_mfma_f32_32x32x16_bf16 {acc}, v[{vC+4*t}:{vC+4*t+3}], v[{vX}:{vX+3}], {acc}')
    vRS = vS + 4
    g(f'v_mul_f32 v{vRS}, {LOG2E:#x}, v{vS+3}')
    vAD = vT + 4
    g(f"""
    s_lshl_b32 s{sT0}, s{sMT}, 2
    s_add_u32 s{sT0}, s{sT0}, s{w}
    s_mul_i32 s{sT0}, s{sT0}, 114688
    s_lshl_b32 s{sT1}, s{sNJ}, 13
    s_add_u32 s{sT0}, s{sT0}, s{sT1}
    v_lshlrev_b32 v{vAD}, 4, v1
    v_add_u32 v{vAD}, s{sT0}, v{vAD}
    """)
    vE, vP = vA, vA + 16
    for t in range(4):
        a0 = vACC + 16 * t
        for i in range(16): g(f'v_mul_f32 v{a0+i}, v{vRS}, v{a0+i}')
        for i in range(16): g(f'v_exp_f32 v{vE+i}, v{a0+i}')
        for i in range(16): g(f'v_add_f32 v{vE+i}, 1.0, v{vE+i}')
        for i in range(16): g(f'v_fma_f32 v{vE+i}, v{vE+i}, v{vE+i}, 1.0')
        for i in range(16): g(f'v_rcp_f32 v{vE+i}, v{vE+i}')
        for i in range(16): g(f'v_fma_f32 v{vE+i}, v{vE+i}, -2.0, 1.0')
        for i in range(16): g(f'v_mul_f32 v{vE+i}, v{vE+i}, v{a0+i}')
        for i in range(8): g(f'v_cvt_pk_bf16_f32 v{vP+i}, v{vE+2*i}, v{vE+2*i+1}')
        g(f"""
        s_add_u32 s{sT0}, s{w}, {t}
        s_and_b32 s{sT0}, s{sT0}, 3
        s_lshl_b32 s{sT0}, s{sT0}, 11
        """)
        g(f'buffer_store_dwordx4 v[{vP}:{vP+3}], v{vAD}, {srd(SRD_WS)}, s{sT0} offen{sc}')
        g(f'buffer_store_dwordx4 v[{vP+4}:{vP+7}], v{vAD}, {srd(SRD_WS)}, s{sT0} offen offset:1024{sc}')


CH = 13056
cHA, cHB, cUR = 0, 4160, 8320
C_RED = 2 * CH
C_ZS = C_RED + 16384
LDS2 = C_ZS + 8192
vB = 64
vAR = 192
aCV = 224

def conv_load(g, base=0, fused=False):
    w = sW
    sc = ' sc1' if fused else ''
    t = vT
    g(f"""
    s_lshr_b32 s59, s{w}, 1
    s_and_b32 s61, s{w}, 1
    s_lshl_b32 s60, s2, 1
    s_add_u32 s60, s60, s59
    s_lshl_b32 s{sT0}, s60, 12
    s_lshl_b32 s{sT1}, s61, 11
    s_add_u32 s{sT0}, s{sT0}, s{sT1}
    v_lshlrev_b32 v{t}, 4, v1
    v_add_u32 v{t}, s{sT0}, v{t}
    v_add_u32 v{t+1}, 4, v{t}
    v_add_u32 v{t+2}, {UR_OFF}, v{t}
    buffer_load_dwordx4 v[{vB}:{vB+3}], v{t}, {srd(SRD_H)}, 0 offen
    buffer_load_dwordx4 v[{vB+4}:{vB+7}], v{t}, {srd(SRD_H)}, 0 offen offset:1024
    buffer_load_dwordx4 v[{vB+8}:{vB+11}], v{t+1}, {srd(SRD_H)}, 0 offen
    buffer_load_dwordx4 v[{vB+12}:{vB+15}], v{t+1}, {srd(SRD_H)}, 0 offen offset:1024
    """)
    tok_h = g.vmark()
    g(f"""
    buffer_load_dwordx4 v[{vB+16}:{vB+19}], v{t+2}, {srd(SRD_WS)}, 0 offen{sc}
    buffer_load_dwordx4 v[{vB+20}:{vB+23}], v{t+2}, {srd(SRD_WS)}, 0 offen offset:1024{sc}
    """)
    return tok_h, g.vmark()

def conv_fill(g, tok_h, tok_u, base=0):
    w = sW
    t = vT
    g(f"""
    s_mul_i32 s{sT0}, s59, {CH}
    s_add_u32 s62, s{sT0}, {base}
    s_lshl_b32 s{sT1}, s61, 11
    s_add_u32 s{sT0}, s62, s{sT1}
    v_lshlrev_b32 v{t}, 4, v1
    v_add_u32 v{t}, s{sT0}, v{t}
    """)
    g.vwait(tok_h)
    for k in range(4):
        g(f'v_alignbit_b32 v{vB+8+k}, v{vB+8+k}, v{vB+k}, 16')
        g(f'v_alignbit_b32 v{vB+12+k}, v{vB+12+k}, v{vB+4+k}, 16')
    g(f"""
    ds_write_b128 v{t}, v[{vB}:{vB+3}] offset:{cHA+32}
    ds_write_b128 v{t}, v[{vB+4}:{vB+7}] offset:{cHA+32+1024}
    ds_write_b128 v{t}, v[{vB+8}:{vB+11}] offset:{cHB+32}
    ds_write_b128 v{t}, v[{vB+12}:{vB+15}] offset:{cHB+32+1024}
    v_readfirstlane_b32 s{sT2}, v{vB}
    v_mov_b32 v{vB+24}, 0
    v_mov_b32 v{vB+25}, 0
    v_mov_b32 v{vB+26}, 0
    v_mov_b32 v{vB+27}, 0
    v_lshlrev_b32 v{t+1}, 4, v1
    v_add_u32 v{t+1}, s62, v{t+1}
    s_lshl_b32 s{sT2}, s{sT2}, 16
    s_cmp_eq_u32 s61, 0
    s_cbranch_scc0 L_cv_par1
    s_mov_b64 exec, 3
    ds_write_b128 v{t+1}, v[{vB+24}:{vB+27}] offset:{cHA}
    v_cmp_eq_u32 vcc, 1, v1
    v_mov_b32 v{vB+28}, s{sT2}
    v_cndmask_b32 v{vB+27}, 0, v{vB+28}, vcc
    ds_write_b128 v{t+1}, v[{vB+24}:{vB+27}] offset:{cHB}
    s_mov_b64 exec, -1
    s_branch L_cv_join
    L_cv_par1:
    s_mov_b64 exec, 0x3fffffff
    ds_write_b128 v{t+1}, v[{vB+24}:{vB+27}] offset:{cUR+4096}
    s_mov_b64 exec, -1
    L_cv_join:
    """)
    g.vwait(tok_u)
    g(f"""
    ds_write_b128 v{t}, v[{vB+16}:{vB+19}] offset:{cUR}
    ds_write_b128 v{t}, v[{vB+20}:{vB+23}] offset:{cUR+1024}
    """)

def conv_main(g, base=0, filler=None):
    w = sW
    t = vT
    vAA = t + 2
    vBA = t + 6
    i_odd = t
    g(f"""
    v_and_b32 v{t}, 15, v1
    v_add_u32 v{t+1}, 1, v{t}
    v_lshrrev_b32 v{t+1}, 1, v{t+1}
    v_lshrrev_b32 v{vBA}, 4, v1
    v_lshl_add_u32 v{t+1}, v{vBA}, 2, v{t+1}
    v_lshlrev_b32 v{t+1}, 2, v{t+1}
    v_and_b32 v{vAA}, 1, v1
    v_cmp_eq_u32 vcc, 0, v{vAA}
    v_mov_b32 v{vAA+1}, {cHB}
    v_cndmask_b32 v{vAA}, 0, v{vAA+1}, vcc
    s_lshl_b32 s{sT1}, s61, 6
    s_add_u32 s{sT0}, s62, s{sT1}
    v_add3_u32 v{vAA}, v{vAA}, v{t+1}, s{sT0}
    v_add_u32 v{vAA+1}, 1024, v{vAA}
    v_add_u32 v{vAA+2}, 2048, v{vAA}
    v_add_u32 v{vAA+3}, 3072, v{vAA}
    v_lshlrev_b32 v{vBA}, 4, v{vBA}
    v_lshlrev_b32 v{t}, 5, v{t}
    v_sub_u32 v{vBA}, v{vBA}, v{t}
    s_add_u32 s{sT0}, s{sT0}, {cUR + 480}
    v_add_u32 v{vBA}, s{sT0}, v{vBA}
    s_waitcnt lgkmcnt(0)
    s_barrier
    """)
    def rdA(m):
        d = vAR + 4 * (m & 3); a = vAA + (m >> 3); o = 32 * (m & 7)
        return [f'ds_read2_b32 v[{d}:{d+1}], v{a} offset0:{o} offset1:{o+1}',
                f'ds_read2_b32 v[{d+2}:{d+3}], v{a} offset0:{o+2} offset1:{o+3}']
    def rdB(phi):
        d = vB + 4 * phi
        return f'ds_read_b128 v[{d}:{d+3}], v{vBA} offset:{128*phi}'
    tokA = {}; tokB = {}
    def issueA(m):
        for r in rdA(m): g(r)
        tokA[m] = g.lmark()
    issueA(0)
    for j in range(7, -1, -1):
        g(rdB(28 - 4 * j)); tokB[28 - 4 * j] = g.lmark()
    issueA(1)
    for m in range(32):
        js = list(range(7, (m >> 2) - 1, -1))
        pre = []
        if m + 1 <= 3:
            pre = [('B', m + 1 + 28 - 4 * j) for j in range(7, -1, -1)]
        if m + 2 < 32: pre = [('A', m + 2)] + pre if m + 1 > 3 else pre[:2] + [('A', m + 2)] + pre[2:]
        waited = -1
        for idx, j in enumerate(js):
            phi = m - 4 * j + 28
            need = max(tokA[m], tokB[phi])
            if need > waited:
                g.lwait(need); waited = need
            d = vAR + 4 * (m & 3)
            acc = ar(aCV + 4 * j, 4)
            c = '0' if m == 0 else acc
            g(f'v_mfma_f32_16x16x32_bf16 {acc}, v[{d}:{d+3}], v[{vB+4*phi}:{vB+4*phi+3}], {c}')
            n = -(-len(pre) // (len(js) - idx)) if pre else 0
            for _ in range(n):
                kind, x = pre.pop(0)
                if kind == 'A': issueA(x)
                else:
                    g(rdB(x)); tokB[x] = g.lmark()
            if filler: filler(g)

def conv_epilogue(g, base=0, fused=False):
    w = sW
    t = vT
    sc = ' sc1' if fused else ''
    g(f"""
    s_lshl_b32 s{sT0}, s{w}, 12
    s_add_u32 s{sT0}, s{sT0}, {base + C_RED}
    v_lshlrev_b32 v{t}, 4, v1
    v_add_u32 v{t+1}, s{sT0}, v{t}
    s_xor_b32 s{sT1}, s{w}, 1
    s_lshl_b32 s{sT1}, s{sT1}, 12
    s_add_u32 s{sT1}, s{sT1}, {base + C_RED}
    v_add_u32 v{t+2}, s{sT1}, v{t}
    s_cmp_eq_u32 s61, 0
    s_cbranch_scc0 L_cv_e1
    """)
    for jj in range(4):
        g(f'ds_write_b128 v{t+1}, {ar(aCV+16+4*jj, 4)} offset:{1024*jj}')
    for r in range(16):
        g(f'v_accvgpr_read_b32 v{vB+r}, a{aCV+r}')
    g('s_branch L_cv_e2\nL_cv_e1:')
    for jj in range(4):
        g(f'ds_write_b128 v{t+1}, {ar(aCV+4*jj, 4)} offset:{1024*jj}')
    for r in range(16):
        g(f'v_accvgpr_read_b32 v{vB+r}, a{aCV+16+r}')
    g('L_cv_e2:')
    g.lg -= 4
    g(f"""
    v_and_b32 v{t+3}, 15, v1
    v_lshlrev_b32 v{t+3}, 5, v{t+3}
    v_lshrrev_b32 v{t+4}, 4, v1
    v_lshl_add_u32 v{t+3}, v{t+4}, 3, v{t+3}
    s_lshl_b32 s{sT0}, s61, 11
    s_sub_u32 s{sT0}, s62, s{sT0}
    s_add_u32 s{sT0}, s{sT0}, {cUR + 4088 - 1536}
    v_sub_u32 v{t+4}, s{sT0}, v{t+3}
    """)
    for jj in range(4):
        g(f'ds_read_b64 v[{vB+32+2*jj}:{vB+33+2*jj}], v{t+4} offset:{512*(3-jj)}')
    g('s_waitcnt lgkmcnt(0)\ns_barrier')
    for jj in range(4):
        g(f'ds_read_b128 v[{vB+16+4*jj}:{vB+19+4*jj}], v{t+2} offset:{1024*jj}')
    for jj in range(4):
        u0, u1 = vB + 32 + 2 * jj, vB + 33 + 2 * jj
        o = vB + 40 + 4 * jj
        g(f"""
        v_and_b32 v{o}, 0xffff0000, v{u1}
        v_lshlrev_b32 v{o+1}, 16, v{u1}
        v_and_b32 v{o+2}, 0xffff0000, v{u0}
        v_lshlrev_b32 v{o+3}, 16, v{u0}
        """)
    for r in range(16):
        g(f'v_fmac_f32 v{vB+r}, s63, v{vB+40+r}')
    g('s_waitcnt lgkmcnt(0)')
    for r in range(16):
        g(f'v_add_f32 v{vB+r}, v{vB+r}, v{vB+16+r}')
    for jj in range(4):
        g(f'v_cvt_pk_bf16_f32 v{vB+32+2*jj}, v{vB+4*jj}, v{vB+4*jj+1}')
        g(f'v_cvt_pk_bf16_f32 v{vB+33+2*jj}, v{vB+4*jj+2}, v{vB+4*jj+3}')
    g(f"""
    s_lshl_b32 s{sT0}, s{w}, 11
    s_add_u32 s{sT0}, s{sT0}, {base + C_ZS}
    v_add_u32 v{t+3}, s{sT0}, v{t+3}
    v_add_u32 v{t}, s{sT0}, v{t}
    """)
    for jj in range(4):
        g(f'ds_write_b64 v{t+3}, v[{vB+32+2*jj}:{vB+33+2*jj}] offset:{512*jj}')
    g(f"""
    s_lshl_b32 s{sT0}, s60, 12
    s_lshl_b32 s{sT1}, s61, 11
    s_add_u32 s{sT0}, s{sT0}, s{sT1}
    s_add_u32 s{sT0}, s{sT0}, {Z_OFF}
    v_lshlrev_b32 v{t+1}, 4, v1
    v_add_u32 v{t+1}, s{sT0}, v{t+1}
    s_waitcnt lgkmcnt(0)
    ds_read_b128 v[{vB}:{vB+3}], v{t}
    ds_read_b128 v[{vB+4}:{vB+7}], v{t} offset:1024
    s_waitcnt lgkmcnt(1)
    buffer_store_dwordx4 v[{vB}:{vB+3}], v{t+1}, {srd(SRD_WS)}, 0 offen{sc}
    s_waitcnt lgkmcnt(0)
    buffer_store_dwordx4 v[{vB+4}:{vB+7}], v{t+1}, {srd(SRD_WS)}, 0 offen offset:1024{sc}
    """)

def load_D(g):
    g(f"""
    s_lshl_b32 s{sT0}, s2, 2
    s_load_dword s63, s[{pDD}:{pDD+1}], s{sT0}
    s_waitcnt lgkmcnt(0)
    s_lshr_b32 s{sT1}, s{sW}, 1
    s_cmp_eq_u32 s{sT1}, 0
    s_cbranch_scc0 L_dhi
    s_lshl_b32 s63, s63, 16
    L_dhi:
    s_and_b32 s63, s63, 0xffff0000
    """)

def phase2(g):
    load_D(g)
    th, tu = conv_load(g)
    conv_fill(g, th, tu)
    conv_main(g)
    conv_epilogue(g)

W2R = 0
G2_RED = 0
XT = 65536
ZT = XT + 8192
LDS3 = ZT + 8192
vACC2 = 64
vACT = 128
NRING = 8

def w2_setup(g, ring_base):
    w = sW; t = vT
    vWD2, vWR2 = 32, 33
    g(f"""
    v_lshrrev_b32 v{t}, 3, v1
    s_mul_i32 s{sT0}, s{w}, {28*16}
    v_add_u32 v{t}, s{sT0}, v{t}
    v_mul_u32_u24 v{t}, 896, v{t}
    v_and_b32 v{t+1}, 7, v1
    v_bfe_u32 v{t+2}, v1, 4, 1
    v_lshlrev_b32 v{t+2}, 2, v{t+2}
    v_xor_b32 v{t+1}, v{t+1}, v{t+2}
    v_lshl_add_u32 v{t}, v{t+1}, 4, v{t}
    s_lshl_b32 s{sT0}, s{sNC}, 7
    v_add_u32 v{vWD2}, s{sT0}, v{t}
    s_mul_i32 s58, s{w}, {NRING*2048}
    s_add_u32 s58, s58, {ring_base}
    v_bfe_u32 v{t}, v1, 2, 2
    v_lshrrev_b32 v{t+1}, 5, v1
    v_lshl_add_u32 v{t+1}, v{t+1}, 2, v{t}
    v_lshlrev_b32 v{t+1}, 7, v{t+1}
    v_bfe_u32 v{t+2}, v1, 4, 1
    v_lshlrev_b32 v{t+2}, 5, v{t+2}
    v_and_b32 v{t+3}, 3, v1
    v_lshl_add_u32 v{t+2}, v{t+3}, 3, v{t+2}
    v_add3_u32 v{t+1}, v{t+1}, v{t+2}, s58
    v_lshrrev_b32 v{t}, 1, v{t}
    s_and_b32 s{sT0}, s{w}, 1
    v_xor_b32 v{t}, s{sT0}, v{t}
    v_lshl_add_u32 v{vWR2}, v{t}, 6, v{t+1}
    v_xor_b32 v{t}, 1, v{t}
    v_lshl_add_u32 v{vWR2+1}, v{t}, 6, v{t+1}
    """)
    return vWD2, vWR2

def w2_dma(ks, vWD2):
    sl = ks % NRING
    return [[f's_add_u32 m0, s58, {sl*2048 + q*1024}',
             f's_mov_b32 s{sT5}, {(16*ks + 8*q)*896}',
             f'buffer_load_dwordx4 v{vWD2}, {srd(SRD_W2)}, s{sT5} offen lds'] for q in range(2)]

def w2_reads(ks, vWR2):
    sl = ks % NRING
    L = []
    for dl in range(2):
        a = 8 * ks + 4 * dl
        L.append(f'ds_read_b64_tr_b16 {ar(a, 2)}, v{vWR2+dl} offset:{sl*2048}')
        L.append(f'ds_read_b64_tr_b16 {ar(a+2, 2)}, v{vWR2+dl} offset:{sl*2048+1024}')
    return L

def act_addr(g):
    w = sW; t = vT
    g(f"""
    s_lshr_b32 s{sT0}, s{w}, 1
    s_lshl_b32 s{sT1}, s{sM2}, 1
    s_add_u32 s{sT2}, s{sT1}, s{sT0}
    s_xor_b32 s{sT0}, s{sT0}, 1
    s_add_u32 s{sT1}, s{sT1}, s{sT0}
    s_mul_i32 s{sT2}, s{sT2}, 114688
    s_mul_i32 s{sT1}, s{sT1}, 114688
    s_mul_i32 s{sT0}, s{w}, {28*1024}
    s_add_u32 s{sT2}, s{sT2}, s{sT0}
    s_add_u32 s{sT1}, s{sT1}, s{sT0}
    v_lshlrev_b32 v{t}, 4, v1
    v_add_u32 v46, s{sT2}, v{t}
    v_add_u32 v47, s{sT1}, v{t}
    """)

def act_load(ks, beta, sc):
    slot = (2 * ks + beta) % 32
    d = vACT + 4 * slot
    return [f's_mov_b32 s{sT4}, {(ks >> 2) * 4096}',
            f'buffer_load_dwordx4 v[{d}:{d+3}], v{46+beta}, {srd(SRD_WS)}, s{sT4} offen offset:{(ks & 3)*1024}{sc}']

def final_loads(g, fused):
    w = sW; t = vT
    g(f"""
    v_lshrrev_b32 v{t}, 3, v1
    s_lshl_b32 s{sT0}, s{sM2}, 6
    s_lshl_b32 s{sT1}, s{w}, 4
    s_add_u32 s{sT0}, s{sT0}, s{sT1}
    v_add_u32 v{t}, s{sT0}, v{t}
    v_mul_u32_u24 v{t}, 896, v{t}
    s_lshl_b32 s{sT0}, s{sNC}, 7
    v_add_u32 v{t}, s{sT0}, v{t}
    v_and_b32 v{t+1}, 7, v1
    v_lshrrev_b32 v{t+2}, 4, v1
    v_xor_b32 v{t+1}, v{t+1}, v{t+2}
    v_lshl_add_u32 v36, v{t+1}, 4, v{t}
    v_xor_b32 v{t+1}, 4, v{t+1}
    v_lshl_add_u32 v37, v{t+1}, 4, v{t}
    v_add_u32 v37, {8*896}, v37
    s_lshl_b32 s{sT2}, s{w}, 11
    s_add_u32 m0, s{sT2}, {XT}
    s_nop 0
    buffer_load_dwordx4 v36, {srd(SRD_Q)}, 0 offen lds
    s_add_u32 m0, s{sT2}, {XT+1024}
    s_nop 0
    buffer_load_dwordx4 v37, {srd(SRD_Q)}, 0 offen lds
    """)

def z_load(g, fused):
    w = sW; t = vT
    sc = ' sc1' if fused else ''
    g(f"""
    v_lshrrev_b32 v{t}, 3, v1
    s_lshl_b32 s{sT0}, s{sNC}, 6
    s_lshl_b32 s{sT1}, s{w}, 4
    s_add_u32 s{sT0}, s{sT0}, s{sT1}
    v_add_u32 v{t}, s{sT0}, v{t}
    v_lshlrev_b32 v{t}, 12, v{t}
    v_and_b32 v{t+1}, 7, v1
    v_lshl_add_u32 v{t}, v{t+1}, 4, v{t}
    s_lshl_b32 s{sT0}, s{sM2}, 7
    s_add_u32 s{sT0}, s{sT0}, {Z_OFF}
    v_add_u32 v{t}, s{sT0}, v{t}
    v_add_u32 v{t+1}, {8*4096}, v{t}
    s_lshl_b32 s{sT2}, s{w}, 11
    s_add_u32 m0, s{sT2}, {ZT}
    s_nop 0
    buffer_load_dwordx4 v{t}, {srd(SRD_WS)}, 0 offen{sc} lds
    s_add_u32 m0, s{sT2}, {ZT+1024}
    s_nop 0
    buffer_load_dwordx4 v{t+1}, {srd(SRD_WS)}, 0 offen{sc} lds
    """)

def gemm2_main(g, sc, atok):
    tk = atok
    for ks in range(28):
        g.vwait(tk[(ks, 1)])
        for dl in range(2):
            for beta in range(2):
                acc = vr(vACC2 + 16 * (dl + 2 * beta), 16)
                slot = (2 * ks + beta) % 32
                c = '0' if ks == 0 else acc
                g(f'v_mfma_f32_32x32x16_bf16 {acc}, {ar(8*ks + 4*dl, 4)}, v[{vACT+4*slot}:{vACT+4*slot+3}], {c}')
        if ks + 16 < 28:
            for beta in range(2):
                g('\n'.join(act_load(ks + 16, beta, sc))); tk[(ks + 16, beta)] = g.vmark()

def gemm2_final(g, fused):
    w = sW; t = vT
    g(f"""
    v_lshlrev_b32 v{t}, 4, v1
    s_barrier
    """)
    for sig in range(3):
        x = sig + 1
        g(f"""
        s_xor_b32 s{sT0}, s{w}, {x}
        s_mul_i32 s{sT0}, s{sT0}, 12288
        s_add_u32 s{sT0}, s{sT0}, {G2_RED + sig*4096}
        v_add_u32 v{t+1+sig}, s{sT0}, v{t}
        """)
        for qd in range(4):
            a = vACC2 + 16 * x + 4 * qd
            g(f'ds_write_b128 v{t+1+sig}, v[{a}:{a+3}] offset:{1024*qd}')
    g(f"""
    s_lshr_b32 s{sT2}, s{w}, 1
    s_and_b32 s{sT3}, s{w}, 1
    v_and_b32 v{t+4}, 31, v1
    s_lshl_b32 s{sT0}, s{sT2}, 5
    v_add_u32 v{t+5}, s{sT0}, v{t+4}
    v_lshlrev_b32 v{t+6}, 7, v{t+5}
    v_lshrrev_b32 v{t+7}, 5, v1
    v_lshl_add_u32 v{t+6}, v{t+7}, 3, v{t+6}
    v_add_u32 v{t+6}, {XT}, v{t+6}
    v_bfe_u32 v{t+8}, v1, 1, 3
    s_lshl_b32 s{sT0}, s{sT3}, 2
    v_xor_b32 v{t+8}, s{sT0}, v{t+8}
    """)
    vXA = 38
    for jj in range(4):
        g(f"""
        v_xor_b32 v{t+9}, {jj}, v{t+8}
        v_lshl_add_u32 v{vXA+jj}, v{t+9}, 4, v{t+6}
        """)
    g(f"""
    v_bfe_u32 v{t+8}, v1, 2, 2
    v_lshl_add_u32 v{t+8}, v{t+7}, 2, v{t+8}
    s_lshl_b32 s{sT0}, s{sT3}, 5
    v_add_u32 v{t+8}, s{sT0}, v{t+8}
    v_lshlrev_b32 v{t+8}, 7, v{t+8}
    v_bfe_u32 v{t+9}, v1, 4, 1
    v_lshlrev_b32 v{t+9}, 5, v{t+9}
    v_and_b32 v{t+10}, 3, v1
    v_lshl_add_u32 v{t+9}, v{t+10}, 3, v{t+9}
    s_lshl_b32 s{sT0}, s{sT2}, 6
    s_add_u32 s{sT0}, s{sT0}, {ZT}
    v_add3_u32 v42, v{t+8}, v{t+9}, s{sT0}
    """)
    if fused:
        g(f"""
        s_and_b32 s{sT0}, s{sM2}, 1
        s_lshl_b32 s{sT0}, s{sT0}, 9
        s_add_u32 s{sT0}, s{sT0}, {ST}
        v_lshlrev_b32 v{t+5}, 3, v{t+5}
        v_add_u32 v{t+5}, s{sT0}, v{t+5}
        ds_read_b64 v[44:45], v{t+5}
        """)
    g('s_waitcnt lgkmcnt(0)')
    g('s_barrier')
    g(f"""
    s_mul_i32 s{sT0}, s{w}, 12288
    s_add_u32 s{sT0}, s{sT0}, {G2_RED}
    v_add_u32 v{t+1}, s{sT0}, v{t}
    """)
    R = vACT
    for sig in range(3):
        for qd in range(4):
            a = R + 16 * sig + 4 * qd
            g(f'ds_read_b128 v[{a}:{a+3}], v{t+1} offset:{sig*4096 + qd*1024}')
    XR, ZR = vACT + 48, vACT + 56
    for jj in range(4):
        g(f'ds_read_b64 v[{XR+2*jj}:{XR+2*jj+1}], v{vXA+jj}')
    tz = g.lmark()
    A = vACC2
    g('s_waitcnt lgkmcnt(12)')
    for r in range(16): g(f'v_add_f32 v{A+r}, v{A+r}, v{R+r}')
    for jj in range(4):
        g(f'ds_read_b64_tr_b16 v[{ZR+2*jj}:{ZR+2*jj+1}], v42 offset:{jj*1024}')
    g('s_waitcnt lgkmcnt(12)')
    for r in range(16): g(f'v_add_f32 v{A+r}, v{A+r}, v{R+16+r}')
    g('s_waitcnt lgkmcnt(8)')
    for r in range(16): g(f'v_add_f32 v{A+r}, v{A+r}, v{R+32+r}')
    g('s_waitcnt lgkmcnt(0)')
    XF, ZF = vACT, vACT + 16
    for jj in range(4):
        for p in range(2):
            g(f'v_lshlrev_b32 v{XF+4*jj+2*p}, 16, v{XR+2*jj+p}')
            g(f'v_and_b32 v{XF+4*jj+2*p+1}, 0xffff0000, v{XR+2*jj+p}')
            g(f'v_lshlrev_b32 v{ZF+4*jj+2*p}, 16, v{ZR+2*jj+p}')
            g(f'v_and_b32 v{ZF+4*jj+2*p+1}, 0xffff0000, v{ZR+2*jj+p}')
    g(f's_mov_b32 s{sT0}, {LN2:#x}')
    for r in range(16): g(f'v_fma_f32 v{A+r}, v{A+r}, s{sT0}, v{XF+r}')
    for r in range(16): g(f'v_sub_f32 v{XF+r}, v{XF+r}, v44')
    for r in range(16): g(f'v_mul_f32 v{ZF+r}, v{ZF+r}, v45')
    for r in range(16): g(f'v_fmac_f32 v{A+r}, v{XF+r}, v{ZF+r}')
    for jj in range(4):
        g(f'v_cvt_pk_bf16_f32 v{XR+2*jj}, v{A+4*jj}, v{A+4*jj+1}')
        g(f'v_cvt_pk_bf16_f32 v{XR+2*jj+1}, v{A+4*jj+2}, v{A+4*jj+3}')
    for jj in range(4):
        g(f'ds_write_b64 v{vXA+jj}, v[{XR+2*jj}:{XR+2*jj+1}]')
    g(f"""
    s_lshl_b32 s{sT0}, s{w}, 11
    s_add_u32 s{sT0}, s{sT0}, {XT}
    v_add_u32 v{t}, s{sT0}, v{t}
    s_waitcnt lgkmcnt(0)
    s_barrier
    ds_read_b128 v[{R}:{R+3}], v{t}
    ds_read_b128 v[{R+4}:{R+7}], v{t} offset:1024
    s_waitcnt lgkmcnt(1)
    buffer_store_dwordx4 v[{R}:{R+3}], v36, {srd(SRD_OUT)}, 0 offen
    s_waitcnt lgkmcnt(0)
    buffer_store_dwordx4 v[{R+4}:{R+7}], v37, {srd(SRD_OUT)}, 0 offen
    """)

def phase3(g):
    w = sW; t = vT
    vWD2, vWR2 = w2_setup(g, W2R)
    act_addr(g)
    vtok = {}
    for ks in range(NRING):
        for p in w2_dma(ks, vWD2): g('\n'.join(p))
        vtok[ks] = g.vmark()
    final_loads(g, False)
    z_load(g, False)
    g(f"""
    s_lshr_b32 s{sT2}, s{w}, 1
    s_lshl_b32 s{sT2}, s{sT2}, 5
    s_lshl_b32 s{sT0}, s{sM2}, 6
    s_add_u32 s{sT0}, s{sT0}, s{sT2}
    v_and_b32 v{t}, 31, v1
    v_add_u32 v{t}, s{sT0}, v{t}
    v_lshlrev_b32 v{t}, 3, v{t}
    s_mov_b32 s{sT0}, {ST_OFF}
    buffer_load_dwordx2 v[44:45], v{t}, {srd(SRD_WS)}, s{sT0} offen
    """)
    atok = {}
    for ks in range(16):
        for beta in range(2):
            g('\n'.join(act_load(ks, beta, ''))); atok[(ks, beta)] = g.vmark()
    prev = None
    for ks in range(28):
        g.vwait(vtok[ks])
        for r in w2_reads(ks, vWR2): g(r)
        cur = g.lmark()
        if prev is not None and ks - 1 + NRING < 28:
            g.lwait(prev)
            for p in w2_dma(ks - 1 + NRING, vWD2): g('\n'.join(p))
            vtok[ks - 1 + NRING] = g.vmark()
        prev = cur
    g('s_waitcnt lgkmcnt(0)')
    gemm2_main(g, '', atok)
    g('s_waitcnt vmcnt(0)')
    gemm2_final(g, False)

def kernel_wrap(label, body, vgprs=512, accum=256):
    return f"""
.text
.globl {label}
.p2align 8
.type {label},@function
{label}:
{body}
.section .rodata,"a"
.p2align 6
.amdhsa_kernel {label}
  .amdhsa_next_free_vgpr {vgprs}
  .amdhsa_next_free_sgpr 96
  .amdhsa_accum_offset {accum}
  .amdhsa_group_segment_fixed_size 0
  .amdhsa_kernarg_size 104
  .amdhsa_user_sgpr_count 2
  .amdhsa_user_sgpr_kernarg_segment_ptr 1
  .amdhsa_system_sgpr_workgroup_id_x 1
.end_amdhsa_kernel
"""

def make_kernel(label, tag, fn):
    g = Gen()
    prologue(g, tag)
    fn(g)
    g(f'L_end_{tag}:\ns_endpgm')
    body, n = g.text()
    return kernel_wrap(label, body), n

def multi3():
    k1, _ = make_kernel('p1_kernel', 'p1', lambda g: phase1(g, False))
    k2, _ = make_kernel('p2_kernel', 'p2', phase2)
    k3, _ = make_kernel('p3_kernel', 'p3', phase3)
    return k1 + k2 + k3

if __name__ == '__main__':
    print(multi3())
```

```python
import sys, gen
HDR = open('parallel_sum__ssm_conv_h3__dense_activation_mish__prompt.s.ref').read().split('\n')
hdr = []
for l in HDR:
    if l.startswith('; @launch') or l.startswith('; Override launch') or l.startswith('; grid=ceil'): continue
    if not l.startswith(';'): break
    hdr.append(l)
def write(path, launches, body):
    s = '\n'.join(hdr) + '\n'
    for k, grid, block, lds in launches:
        if k is None: s += f'; @launch grid=({grid},1,1) block=({block},1,1) lds={lds}\n'
        else: s += f'; @launch kernel={k} grid=({grid},1,1) block=({block},1,1) lds={lds}\n'
    s += '.amdgcn_target "amdgcn-amd-amdhsa--gfx950"\n' + body
    open(path, 'w').write(s)
if __name__ == '__main__':
    write(sys.argv[1], [('p1_kernel', 224, 256, gen.LDS1), ('p2_kernel', 224, 256, gen.LDS2), ('p3_kernel', 224, 256, gen.LDS3)], gen.multi3())
```

```python
import sys
from asmlib import Gen, fix_hazards, check_loop

NAME = 'parallel_sum__ssm_conv_h3__dense_activation_mish__prompt'
S, D, F = 2048, 448, 1792
NWG = 224
ACT_OFF = 0
UR_OFF = 8 << 20
Z_OFF = 10 << 20
ST_OFF = 12 << 20
FLAG_OFF = 13 << 20
WS_USED = 14 << 20
sW, sM2, sNC, sMT, sNJ = 4, 5, 6, 7, 8
SRD_Q, SRD_K, SRD_V, SRD_W1, SRD_WS, SRD_W2, SRD_H, SRD_OUT = 12, 16, 20, 24, 28, 32, 36, 40
pSK, pDD, pB1, pDBG = 44, 46, 48, 50
sT0, sT1, sT2, sT3, sT4, sT5 = 52, 53, 54, 55, 56, 57
LOG2E = 0x3fb8aa3b
LN2 = 0x3f317218

def srd(n): return 's[%d:%d]' % (n, n + 3)
def vr(a, n=1): return 'v%d' % a if n == 1 else 'v[%d:%d]' % (a, a + n - 1)
def ar(a, n=1): return 'a%d' % a if n == 1 else 'a[%d:%d]' % (a, a + n - 1)

STAMPS = False
POL = dict(k='', v='', q='', w1='', w2='', h='', act_ld='', ur_ld='', z_ld='', xq='')
MAP2 = False
BADMAP = False
CODEPF = None
def pol(x): return (' ' + POL[x]) if POL[x] else ''
STAMPSET = 0
def stamp2(g, i):
    if STAMPS and STAMPSET == 1: stamp(g, i, True)
def stamp(g, i, force=False):
    if STAMPS and STAMPSET == 1 and not force: return
    if not (STAMPS or (DBGSTAMP and i == 0)): return
    g(f"""
    s_waitcnt lgkmcnt(0)
    s_memtime s[{68+2*i}:{69+2*i}]
    s_waitcnt lgkmcnt(0)
    """)
def stamp_flush(g, slot):
    if not STAMPS: return
    g(f"""
    s_waitcnt vmcnt(0) lgkmcnt(0)
    s_memtime s[88:89]
    s_memrealtime s[94:95]
    s_waitcnt lgkmcnt(0)
    s_cmp_lg_u32 s{sW}, 0
    s_cbranch_scc1 L_nostamp_{slot}
    s_lshl_b32 s{sT0}, s2, 7
    s_add_u32 s{sT0}, s{sT0}, {FLAG_OFF + slot * 32768}
    v_mov_b32 v2, s{sT0}
    """)
    for i in range(10):
        g(f'v_mov_b32 v{4+i}, s{68+2*i}')
    g(f"""
    v_mov_b32 v14, 0
    v_mov_b32 v15, 0
    v_mov_b32 v16, s92
    v_mov_b32 v17, s88
    v_mov_b32 v18, s90
    v_mov_b32 v19, s94
    s_mov_b64 exec, 1
    buffer_store_dwordx4 v[4:7], v2, {srd(SRD_WS)}, 0 offen
    buffer_store_dwordx4 v[8:11], v2, {srd(SRD_WS)}, 0 offen offset:16
    buffer_store_dwordx4 v[12:15], v2, {srd(SRD_WS)}, 0 offen offset:32
    buffer_store_dwordx4 v[16:19], v2, {srd(SRD_WS)}, 0 offen offset:48
    s_waitcnt vmcnt(0)
    L_nostamp_{slot}:
    """)

DBGSTAMP = False
DBG_LAST = 2
def dbg_flush(g, slot):
    if not DBGSTAMP: return
    g(f"""
    s_waitcnt vmcnt(0) lgkmcnt(0)
    s_memtime s[88:89]
    s_memrealtime s[94:95]
    s_waitcnt lgkmcnt(0)
    s_cmp_lg_u32 s{sW}, 0
    s_cbranch_scc1 L_nodbg_{slot}
    s_cmp_lg_u32 s2, 0
    s_cbranch_scc1 L_nodbg_{slot}
    s_sub_u32 s88, s88, s92
    v_mov_b32 v2, {FLAG_OFF + 65536*4 + 16*slot}
    v_mov_b32 v4, s90
    v_mov_b32 v5, s94
    v_mov_b32 v6, s88
    s_sub_u32 s68, s68, s92
    v_mov_b32 v7, s68
    s_mov_b64 exec, 1
    buffer_store_dwordx4 v[4:7], v2, {srd(SRD_WS)}, 0 offen
    s_waitcnt vmcnt(0)
    """)
    if slot == DBG_LAST:
        g(f'v_mov_b32 v2, {FLAG_OFF + 65536*4}')
        for i in range(slot + 1):
            g(f'buffer_load_dwordx4 v[4:7], v2, {srd(SRD_WS)}, 0 offen offset:{16*i} sc1')
            g(f's_waitcnt vmcnt(0)')
            g(f'v_mov_b32 v3, {16*i}')
            g(f'global_store_dwordx4 v3, v[4:7], s[{pDBG}:{pDBG+1}]')
            g(f's_waitcnt vmcnt(0)')
    g(f'L_nodbg_{slot}:')

def prologue(g, tag):
    if STAMPS or DBGSTAMP:
        g('s_memrealtime s[90:91]\ns_memtime s[92:93]')
    g(f"""
    s_cmp_ge_u32 s2, {NWG}
    s_cbranch_scc1 L_end_{tag}
    s_load_dwordx16 s[64:79], s[0:1], 0
    s_load_dwordx8 s[80:87], s[0:1], 64
    s_load_dwordx2 s[88:89], s[0:1], 96
    v_lshrrev_b32 v2, 6, v0
    v_and_b32 v1, 63, v0
    s_and_b32 s9, s2, 7
    s_lshr_b32 s10, s2, 3
    """)
    if BADMAP:
        g(f"""
    s_mul_i32 s9, s2, 2341
    s_lshr_b32 s9, s9, 16
    s_mul_i32 s10, s9, 28
    s_sub_u32 s10, s2, s10
    """)
    g(f"""
    v_readfirstlane_b32 s{sW}, v2
    s_mul_i32 s11, s10, 37
    s_lshr_b32 s11, s11, 8
    s_mul_i32 s{sNC}, s11, 7
    s_sub_u32 s{sNC}, s10, s{sNC}
    """)
    if not MAP2:
        g(f"""
    s_lshl_b32 s{sM2}, s9, 2
    s_add_u32 s{sM2}, s{sM2}, s11
    s_lshr_b32 s{sMT}, s{sM2}, 1
    s_lshr_b32 s11, s11, 1
    s_mul_i32 s11, s11, 14
    s_sub_u32 s{sNJ}, s10, s11
    """)
    else:
        g(f"""
    s_lshr_b32 s{sMT}, s9, 1
    s_lshl_b32 s{sMT}, s{sMT}, 2
    s_add_u32 s{sMT}, s{sMT}, s11
    s_and_b32 s9, s9, 1
    s_mul_i32 s{sNJ}, s9, 7
    s_add_u32 s{sNJ}, s{sNJ}, s{sNC}
    s_lshl_b32 s{sM2}, s{sMT}, 1
    s_add_u32 s{sM2}, s{sM2}, s9
    """)
    g(f"""
    s_waitcnt lgkmcnt(0)
    """)
    def mk(n, lo, size):
        g(f"""
        s_mov_b32 s{n}, s{lo}
        s_mov_b32 s{n+1}, s{lo+1}
        s_mov_b32 s{n+2}, {size}
        s_mov_b32 s{n+3}, 0x00020000
        """)
    mk(SRD_Q, 64, S * D * 2); mk(SRD_K, 66, S * D * 2); mk(SRD_V, 68, S * D * 2)
    mk(SRD_W1, 78, D * F * 2); mk(SRD_WS, 88, WS_USED); mk(SRD_W2, 82, F * D * 2)
    mk(SRD_H, 72, D * S * 2); mk(SRD_OUT, 84, S * D * 2)
    g(f"""
    s_mov_b32 s{pSK}, s70
    s_mov_b32 s{pSK+1}, s71
    s_mov_b32 s{pDD}, s74
    s_mov_b32 s{pDD+1}, s75
    s_mov_b32 s{pB1}, s80
    s_mov_b32 s{pB1+1}, s81
    s_mov_b32 s{pDBG}, s86
    s_mov_b32 s{pDBG+1}, s87
    """)

G1_SLOT = 32768
PK = 131072
PV = PK + 9216
PU = PV + 8192
EX = PU + 8192
ST = EX + 1024
LDS1 = ST + 1024
vXD0, vXD1, vWD = 2, 3, 4
vXR, vWR = 6, 10
vT = 14
vB1 = 32
vACC = 64
vX, vC, vA, vS, vONE = 128, 144, 160, 184, 208
vKP, vVP, vSKP, vSK, vKF, vO, vPK = 160, 170, 178, 180, 210, 230, 246

def phase1_setup(g):
    w = sW
    g(f"""
    v_lshrrev_b32 v{vT}, 3, v1
    v_and_b32 v{vT+1}, 7, v1
    v_lshlrev_b32 v{vT+2}, 4, v{vT+1}
    s_lshl_b32 s{sT0}, s{sM2}, 6
    s_lshl_b32 s{sT1}, s{w}, 4
    s_add_u32 s{sT0}, s{sT0}, s{sT1}
    v_add_u32 v{vT+3}, s{sT0}, v{vT}
    v_mul_u32_u24 v{vT+3}, 896, v{vT+3}
    s_lshl_b32 s{sT1}, s{sNC}, 7
    v_add3_u32 v{vT+3}, v{vT+3}, s{sT1}, v{vT+2}
    """)
    g(f"""
    v_subrev_u32 v{vT+4}, {8*896}, v{vT+3}
    v_add_u32 v{vT+5}, {8*896}, v{vT+3}
    v_add_u32 v{vT+6}, {56*896}, v{vT+3}
    s_lshl_b32 s{sT2}, s{w}, 11
    s_add_u32 m0, s{sT2}, {PK}
    s_nop 0
    buffer_load_dwordx4 v{vT+4}, {srd(SRD_K)}, 0 offen{pol('k')} lds
    s_add_u32 m0, s{sT2}, {PK+1024}
    s_nop 0
    buffer_load_dwordx4 v{vT+3}, {srd(SRD_K)}, 0 offen{pol('k')} lds
    s_add_u32 m0, s{sT2}, {PV}
    s_nop 0
    buffer_load_dwordx4 v{vT+3}, {srd(SRD_V)}, 0 offen{pol('v')} lds
    s_add_u32 m0, s{sT2}, {PV+1024}
    s_nop 0
    buffer_load_dwordx4 v{vT+5}, {srd(SRD_V)}, 0 offen{pol('v')} lds
    s_cmp_lg_u32 s{w}, 0
    s_cbranch_scc1 L_skipk8
    s_mov_b32 m0, {PK+8192}
    s_nop 0
    buffer_load_dwordx4 v{vT+6}, {srd(SRD_K)}, 0 offen{pol('k')} lds
    L_skipk8:
    """)
    g(f"""
    v_and_b32 v{vT}, 15, v1
    s_lshl_b32 s{sT0}, s{sNC}, 6
    s_lshl_b32 s{sT1}, s{w}, 4
    s_add_u32 s{sT0}, s{sT0}, s{sT1}
    v_add_u32 v{vT}, s{sT0}, v{vT}
    v_lshlrev_b32 v{vT}, 3, v{vT}
    global_load_dwordx2 v[{vSKP}:{vSKP+1}], v{vT}, s[{pSK}:{pSK+1}]
    """)
    tok_pre = g.vmark()
    g(f"""
    v_lshrrev_b32 v{vT}, 3, v1
    v_lshrrev_b32 v{vT+1}, 4, v1
    v_and_b32 v{vT+2}, 7, v1
    s_lshl_b32 s{sT0}, s{sMT}, 7
    s_lshl_b32 s{sT1}, s{w}, 5
    s_add_u32 s{sT0}, s{sT0}, s{sT1}
    v_add_u32 v{vT+3}, s{sT0}, v{vT}
    v_mul_u32_u24 v{vT+3}, 896, v{vT+3}
    v_xor_b32 v{vT+4}, v{vT+2}, v{vT+1}
    v_lshl_add_u32 v{vXD0}, v{vT+4}, 4, v{vT+3}
    v_xor_b32 v{vT+4}, 4, v{vT+4}
    v_lshl_add_u32 v{vXD1}, v{vT+4}, 4, v{vT+3}
    v_add_u32 v{vXD1}, {8*896}, v{vXD1}
    s_lshl_b32 s{sT0}, s{w}, 4
    v_add_u32 v{vT+3}, s{sT0}, v{vT+1}
    v_mul_u32_u24 v{vT+3}, 3584, v{vT+3}
    v_and_b32 v{vT+4}, 15, v1
    v_lshlrev_b32 v{vT+5}, 2, v{vT+1}
    v_xor_b32 v{vT+4}, v{vT+4}, v{vT+5}
    v_lshl_add_u32 v{vT+3}, v{vT+4}, 4, v{vT+3}
    s_lshl_b32 s{sT0}, s{sNJ}, 8
    v_add_u32 v{vWD}, s{sT0}, v{vT+3}
    s_lshl_b32 s58, s{w}, 12
    """)
    return tok_pre

def g1_issue_stage(g, s_stage_x, s_stage_w, s_m0base):
    L = []
    for q in range(4):
        L.append([f's_add_u32 m0, s{s_m0base}, {q*1024}',
                  f's_add_u32 s{sT5}, s{s_stage_x}, {(q >> 1) * 16 * 896}',
                  f'buffer_load_dwordx4 v{vXD0 + (q & 1)}, {srd(SRD_Q)}, s{sT5} offen{pol("q")} lds'])
    for q in range(4):
        L.append([f's_add_u32 m0, s{s_m0base}, {16384 + q*1024}',
                  f's_add_u32 s{sT5}, s{s_stage_w}, {q * 4 * 3584}',
                  f'buffer_load_dwordx4 v{vWD}, {srd(SRD_W1)}, s{sT5} offen{pol("w1")} lds'])
    return L

def code_prefetch(g, label, nkb, tag):
    g(f"""
    s_getpc_b64 s[62:63]
    L_pc_{tag}:
    s_add_u32 s62, s62, {label}-L_pc_{tag}
    s_addc_u32 s63, s63, 0
    s_lshr_b32 s{sT0}, s2, 3
    s_cmp_ge_u32 s{sT0}, {nkb}
    s_cbranch_scc1 L_nopf_{tag}
    s_cmp_lg_u32 s{sW}, 3
    s_cbranch_scc1 L_nopf_{tag}
    s_lshl_b32 s{sT0}, s{sT0}, 10
    v_lshlrev_b32 v{vT}, 4, v1
    v_add_u32 v{vT}, s{sT0}, v{vT}
    global_load_dwordx4 a[0:3], v{vT}, s[62:63]
    L_nopf_{tag}:
    """)

def phase1(g, fused=False):
    w = sW
    if CODEPF: code_prefetch(g, CODEPF[0], CODEPF[1], 'p1')
    stamp2(g, 0)
    tok_pre = phase1_setup(g)
    stamp2(g, 1)
    toks = []
    for st in range(4):
        g(f"""
        s_mov_b32 s59, {st*128}
        s_mov_b32 s60, {st*64*3584}
        s_add_u32 s61, s58, {st*G1_SLOT}
        """)
        for piece in g1_issue_stage(g, 59, 60, 61):
            g('\n'.join(piece))
        toks.append(g.vmark())
        stamp2(g, 2 + st)
    g(f"""
    v_and_b32 v{vT}, 31, v1
    s_lshl_b32 s{sT0}, s{sNJ}, 7
    s_lshl_b32 s{sT1}, s{w}, 5
    s_add_u32 s{sT0}, s{sT0}, s{sT1}
    v_add_u32 v{vT}, s{sT0}, v{vT}
    v_lshlrev_b32 v{vT}, 1, v{vT}
    global_load_ushort v{vB1}, v{vT}, s[{pB1}:{pB1+1}]
    """)
    tok_b1 = g.vmark()
    g(f"""
    v_and_b32 v{vT}, 31, v1
    v_lshrrev_b32 v{vT+1}, 5, v1
    v_bfe_u32 v{vT+2}, v1, 1, 3
    v_lshlrev_b32 v{vT+3}, 7, v{vT}
    v_add_u32 v{vT+3}, s58, v{vT+3}
    """)
    for ks in range(4):
        g(f"""
        v_or_b32 v{vT+4}, {2*ks}, v{vT+1}
        v_xor_b32 v{vT+4}, v{vT+4}, v{vT+2}
        v_lshl_add_u32 v{vXR+ks}, v{vT+4}, 4, v{vT+3}
        """)
    g(f"""
    v_bfe_u32 v{vT}, v1, 2, 2
    v_lshrrev_b32 v{vT+1}, 5, v1
    v_lshl_add_u32 v{vT+1}, v{vT+1}, 3, v{vT}
    v_lshlrev_b32 v{vT+1}, 8, v{vT+1}
    v_bfe_u32 v{vT+2}, v1, 4, 1
    v_lshlrev_b32 v{vT+2}, 5, v{vT+2}
    v_and_b32 v{vT+3}, 3, v1
    v_lshl_add_u32 v{vT+2}, v{vT+3}, 3, v{vT+2}
    v_add_u32 v{vT+1}, v{vT+1}, v{vT+2}
    v_add_u32 v{vT+1}, 16384, v{vT+1}
    """)
    for t in range(4):
        g(f"""
        s_add_u32 s{sT0}, s{w}, {t}
        s_and_b32 s{sT0}, s{sT0}, 3
        v_xor_b32 v{vT+4}, s{sT0}, v{vT}
        v_lshl_add_u32 v{vWR+t}, v{vT+4}, 6, v{vT+1}
        """)
    for r in list(range(vACC, vACC + 64)) + list(range(vX, vX + 32)) + list(range(vS, vS + 24)):
        g(f'v_mov_b32 v{r}, 0')
    g(f"""
    v_mov_b32 v{vONE}, 0x3f803f80
    v_mov_b32 v{vONE+1}, 0x3f803f80
    """)
    stamp2(g, 6)
    g(f"""
    v_lshrrev_b32 v{vT}, 4, v1
    v_bfe_u32 v{vT+1}, v1, 2, 2
    v_lshl_add_u32 v{vT+1}, v{vT}, 4, v{vT+1}
    v_lshlrev_b32 v{vT+1}, 7, v{vT+1}
    v_and_b32 v{vT+2}, 3, v1
    v_lshl_add_u32 v{vT+1}, v{vT+2}, 3, v{vT+1}
    s_lshl_b32 s{sT0}, s{w}, 5
    v_add_u32 v{vT+1}, s{sT0}, v{vT+1}
    v_add_u32 v{vT+2}, {PK + 4*128}, v{vT+1}
    v_add_u32 v{vT+3}, {PV}, v{vT+1}
    """)
    stamp(g, 0)
    g.vwait(tok_pre)
    g('s_barrier')
    stamp(g, 1)
    for i in range(5):
        g(f'ds_read_b64_tr_b16 v[{vKP+2*i}:{vKP+2*i+1}], v{vT+2} offset:{512*i}')
    for i in range(4):
        g(f'ds_read_b64_tr_b16 v[{vVP+2*i}:{vVP+2*i+1}], v{vT+3} offset:{512*i}')
    g(f"""
    v_lshlrev_b32 v{vSK}, 16, v{vSKP}
    v_and_b32 v{vSK+1}, 0xffff0000, v{vSKP}
    v_lshlrev_b32 v{vSK+2}, 16, v{vSKP+1}
    v_and_b32 v{vSK+3}, 0xffff0000, v{vSKP+1}
    s_waitcnt lgkmcnt(4)
    """)
    for i in range(10):
        g(f'v_lshlrev_b32 v{vKF+2*i}, 16, v{vKP+i}')
        g(f'v_and_b32 v{vKF+2*i+1}, 0xffff0000, v{vKP+i}')
    for i in range(16):
        g(f'v_mul_f32 v{vO+i}, v{vSK}, v{vKF+i+4}')
    for j in (1, 2, 3):
        for i in range(16):
            g(f'v_fmac_f32 v{vO+i}, v{vSK+j}, v{vKF+i+4-j}')
    g('s_waitcnt lgkmcnt(0)')
    for i in range(8):
        g(f'v_lshlrev_b32 v{vKF+2*i}, 16, v{vVP+i}')
        g(f'v_and_b32 v{vKF+2*i+1}, 0xffff0000, v{vVP+i}')
    for i in range(16):
        g(f'v_mul_f32 v{vO+i}, v{vO+i}, v{vKF+i}')
    for j in range(8):
        g(f'v_cvt_pk_bf16_f32 v{vPK+j}, v{vO+15-2*j}, v{vO+14-2*j}')
    g(f"""
    v_and_b32 v{vT+1}, 15, v1
    v_lshlrev_b32 v{vT+1}, 7, v{vT+1}
    v_lshlrev_b32 v{vT+2}, 5, v{vT}
    v_sub_u32 v{vT+1}, v{vT+1}, v{vT+2}
    s_lshl_b32 s{sT0}, s{w}, 11
    s_add_u32 s{sT0}, s{sT0}, {PU + 96}
    v_add_u32 v{vT+1}, s{sT0}, v{vT+1}
    ds_write_b128 v{vT+1}, v[{vPK}:{vPK+3}]
    ds_write_b128 v{vT+1}, v[{vPK+4}:{vPK+7}] offset:16
    v_lshlrev_b32 v{vT+2}, 4, v1
    s_sub_u32 s{sT0}, s{sT0}, 96
    v_add_u32 v{vT+2}, s{sT0}, v{vT+2}
    s_waitcnt lgkmcnt(0)
    ds_read_b128 v[{vKF}:{vKF+3}], v{vT+2}
    ds_read_b128 v[{vKF+4}:{vKF+7}], v{vT+2} offset:1024
    v_lshrrev_b32 v{vT+3}, 3, v1
    s_lshl_b32 s{sT0}, s{sNC}, 6
    s_lshl_b32 s{sT1}, s{w}, 4
    s_add_u32 s{sT0}, s{sT0}, s{sT1}
    v_add_u32 v{vT+3}, s{sT0}, v{vT+3}
    v_lshlrev_b32 v{vT+3}, 12, v{vT+3}
    v_and_b32 v{vT+4}, 7, v1
    v_lshl_add_u32 v{vT+3}, v{vT+4}, 4, v{vT+3}
    s_lshl_b32 s{sT0}, s{sM2}, 7
    s_sub_u32 s{sT0}, {UR_OFF + 4096 - 128}, s{sT0}
    v_add_u32 v{vT+3}, s{sT0}, v{vT+3}
    v_add_u32 v{vT+4}, {8*4096}, v{vT+3}
    s_waitcnt lgkmcnt(0)
    """)
    sc = ' sc1' if fused else ''
    g(f'buffer_store_dwordx4 v[{vKF}:{vKF+3}], v{vT+3}, {srd(SRD_WS)}, 0 offen{sc}')
    g(f'buffer_store_dwordx4 v[{vKF+4}:{vKF+7}], v{vT+4}, {srd(SRD_WS)}, 0 offen{sc}')
    tok_u = g.vmark()
    nyoung_base = g.vm
    def reads(ks, part):
        r = []
        if part == 'xc':
            r.append(f'ds_read_b128 v[{vX+4*ks}:{vX+4*ks+3}], v{vXR+ks}')
            r.append(f'ds_read_b64_tr_b16 v[{vC+4*ks}:{vC+4*ks+1}], v{vWR} offset:{ks*4096}')
            r.append(f'ds_read_b64_tr_b16 v[{vC+4*ks+2}:{vC+4*ks+3}], v{vWR} offset:{ks*4096+1024}')
        else:
            for t in (1, 2, 3):
                a = vA + (ks & 1) * 12 + (t - 1) * 4
                r.append(f'ds_read_b64_tr_b16 v[{a}:{a+1}], v{vWR+t} offset:{ks*4096}')
                r.append(f'ds_read_b64_tr_b16 v[{a+2}:{a+3}], v{vWR+t} offset:{ks*4096+1024}')
        return r
    def m4(ks):
        x, c = vX + 4 * ks, vC + 4 * ks
        one = f'v[{vONE}:{vONE+1}]'
        f = lambda i, a, b: f'v_mfma_f32_4x4x4_16b_bf16 v[{vS+4*i}:{vS+4*i+3}], {a}, {b}, v[{vS+4*i}:{vS+4*i+3}]'
        x0, x1, c0, c1 = f'v[{x}:{x+1}]', f'v[{x+2}:{x+3}]', f'v[{c}:{c+1}]', f'v[{c+2}:{c+3}]'
        return [f(0, x0, x0), f(1, x1, x1), f(2, one, x0), f(3, one, x1), f(4, one, c0), f(5, one, c1)]
    def mm(ks, t):
        a = f'v[{vC+4*ks}:{vC+4*ks+3}]' if t == 0 else f'v[{vA+(ks&1)*12+(t-1)*4}:{vA+(ks&1)*12+(t-1)*4+3}]'
        acc = f'v[{vACC+16*t}:{vACC+16*t+15}]'
        return f'v_mfma_f32_32x32x16_bf16 {acc}, {a}, v[{vX+4*ks}:{vX+4*ks+3}], {acc}'
    stamp(g, 2)
    for st in range(7):
        g.vwait(toks[st])
        g('s_barrier')
        if st == 0: stamp(g, 3)
        if st == 4: stamp(g, 4)
        for r in reads(0, 'a'): g(r)
        pend = []
        if st >= 1 and st + 3 <= 6:
            g(f"""
            s_mov_b32 s59, {(st+3)*128}
            s_mov_b32 s60, {(st+3)*64*3584}
            s_add_u32 s61, s58, {((st+3) & 3)*G1_SLOT}
            """)
            pend = g1_issue_stage(g, 59, 60, 61)
        if st >= 1:
            for m in m4(0): g(m)
        for r in reads(0, 'xc'): g(r)
        tk = g.lmark()
        if st >= 1:
            for ks in (1, 2, 3):
                for m in m4(ks): g(m)
                if pend: g('\n'.join(pend.pop(0)))
        for ks in range(4):
            nxt = (reads(ks + 1, 'xc') + reads(ks + 1, 'a')) if ks < 3 else []
            g.lwait(tk)
            chunks = [nxt[0:3], nxt[3:5], nxt[5:7], nxt[7:9]]
            for t in range(4):
                g(mm(ks, t))
                for r in chunks[t]: g(r)
                if t == 3 and pend: g('\n'.join(pend.pop(0)))
                if t == 1 and pend: g('\n'.join(pend.pop(0)))
            tk = g.lmark()
        while pend: g('\n'.join(pend.pop(0)))
        if st >= 1 and st + 3 <= 6: toks.append(g.vmark())
        if st < 6:
            d = G1_SLOT if ((st + 1) & 3) else -3 * G1_SLOT
            for r in list(range(vXR, vXR + 4)) + list(range(vWR, vWR + 4)):
                g(f'v_add_u32 v{r}, {d & 0xffffffff:#x}, v{r}')
    for ks in range(4):
        for m in m4(ks): g(m)
    stamp(g, 5)
    t0 = vT
    g(f"""
    v_and_b32 v{t0}, 3, v1
    v_cmp_eq_u32 s[62:63], 1, v{t0}
    v_cmp_eq_u32 s[64:65], 2, v{t0}
    v_cmp_eq_u32 s[66:67], 3, v{t0}
    """)
    for r in range(4):
        g(f'v_add_f32 v{vS+r}, v{vS+r}, v{vS+4+r}')
    g(f"""
    v_add_f32 v{vS+8}, v{vS+8}, v{vS+12}
    v_add_f32 v{vS+16}, v{vS+16}, v{vS+20}
    v_cndmask_b32 v{vS}, v{vS}, v{vS+1}, s[62:63]
    v_cndmask_b32 v{vS}, v{vS}, v{vS+2}, s[64:65]
    v_cndmask_b32 v{vS}, v{vS}, v{vS+3}, s[66:67]
    v_mov_b32 v{vS+1}, v{vS}
    v_mov_b32 v{vS+9}, v{vS+8}
    v_mov_b32 v{vS+17}, v{vS+16}
    v_permlane32_swap_b32 v{vS}, v{vS+1}
    v_permlane32_swap_b32 v{vS+8}, v{vS+9}
    v_permlane32_swap_b32 v{vS+16}, v{vS+17}
    v_add_f32 v{vS}, v{vS}, v{vS+1}
    v_add_f32 v{vS+8}, v{vS+8}, v{vS+9}
    v_add_f32 v{vS+16}, v{vS+16}, v{vS+17}
    s_mov_b32 s{sT0}, 0x3b124925
    v_mul_f32 v{vS+8}, s{sT0}, v{vS+8}
    v_mul_f32 v{vS}, s{sT0}, v{vS}
    v_fma_f32 v{vS}, -v{vS+8}, v{vS+8}, v{vS}
    v_max_f32 v{vS}, 0, v{vS}
    v_cvt_pk_bf16_f32 v{vS+1}, v{vS}, v{vS}
    v_and_b32 v{vS+1}, 0xffff0000, v{vS+1}
    v_add_f32 v{vS+1}, 0x3727c5ac, v{vS+1}
    v_cvt_pk_bf16_f32 v{vS+1}, v{vS+1}, v{vS+1}
    v_and_b32 v{vS+1}, 0xffff0000, v{vS+1}
    v_sqrt_f32 v{vS+1}, v{vS+1}
    v_cvt_pk_bf16_f32 v{vS+9}, v{vS+8}, v{vS+8}
    v_cvt_pk_bf16_f32 v{vS+1}, v{vS+1}, v{vS+1}
    v_and_b32 v{vS+2}, 0xffff0000, v{vS+1}
    v_rcp_f32 v{vS+3}, v{vS+2}
    v_and_b32 v{vS+10}, 0xffff0000, v{vS+9}
    """)
    g(f"""
    v_cmp_gt_u32 s[62:63], 32, v1
    v_xor_b32 v{vS+9}, 0x80008000, v{vS+9}
    v_and_b32 v{vS+1}, 0xffff, v{vS+1}
    v_mov_b32 v{vX+2}, 0
    v_mov_b32 v{vX+3}, 0
    v_cndmask_b32 v{vX}, 0, v{vS+9}, s[62:63]
    v_cndmask_b32 v{vX+1}, 0, v{vS+1}, s[62:63]
    """)
    g(f"""
    v_and_b32 v{t0}, 31, v1
    s_lshl_b32 s{sT0}, s{w}, 5
    v_add_u32 v{t0}, s{sT0}, v{t0}
    v_lshlrev_b32 v{t0+1}, 3, v{t0}
    v_mov_b32 v{t0+2}, v{vS+10}
    v_mov_b32 v{t0+3}, v{vS+3}
    """)
    assert (t0 + 2) % 2 == 0
    if fused:
        g(f'v_add_u32 v{t0+1}, {ST}, v{t0+1}')
        g(f'ds_write_b64 v{t0+1}, v[{t0+2}:{t0+3}]')
    else:
        g(f"""
        s_lshl_b32 s{sT0}, s{sMT}, 10
        s_add_u32 s{sT0}, s{sT0}, {ST_OFF}
        buffer_store_dwordx2 v[{t0+2}:{t0+3}], v{t0+1}, {srd(SRD_WS)}, s{sT0} offen
        """)
    g.vwait(tok_b1)
    g(f"""
    v_cvt_pk_bf16_f32 v{vS+17}, v{vS+16}, v{vS+16}
    v_and_b32 v{vS+18}, 0xffff0000, v{vS+17}
    v_sub_f32 v{vS+18}, v{vS+16}, v{vS+18}
    v_cvt_pk_bf16_f32 v{vC}, v{vS+16}, v{vS+18}
    v_mov_b32 v{vC+1}, v{vB1}
    v_and_b32 v{t0}, 31, v1
    v_lshlrev_b32 v{t0}, 3, v{t0}
    s_lshl_b32 s{sT0}, s{w}, 8
    s_add_u32 s{sT0}, s{sT0}, {EX}
    v_add_u32 v{t0+1}, s{sT0}, v{t0}
    ds_write_b64 v{t0+1}, v[{vC}:{vC+1}]
    s_waitcnt lgkmcnt(0)
    s_barrier
    """)
    for t in (1, 2, 3):
        g(f"""
        s_add_u32 s{sT0}, s{w}, {t}
        s_and_b32 s{sT0}, s{sT0}, 3
        s_lshl_b32 s{sT0}, s{sT0}, 8
        s_add_u32 s{sT0}, s{sT0}, {EX}
        v_add_u32 v{t0+1}, s{sT0}, v{t0}
        ds_read_b64 v[{vC+4*t}:{vC+4*t+1}], v{t0+1}
        """)
    for t in range(4):
        g(f'v_mov_b32 v{vC+4*t+2}, 0')
        g(f'v_mov_b32 v{vC+4*t+3}, 0')
    g('s_waitcnt lgkmcnt(0)')
    for t in range(4):
        acc = f'v[{vACC+16*t}:{vACC+16*t+15}]'
        g(f'v_mfma_f32_32x32x16_bf16 {acc}, v[{vC+4*t}:{vC+4*t+3}], v[{vX}:{vX+3}], {acc}')
    stamp(g, 6)
    vRS = vS + 4
    g(f'v_mul_f32 v{vRS}, {LOG2E:#x}, v{vS+3}')
    vAD = vT + 4
    g(f"""
    s_lshl_b32 s{sT0}, s{sMT}, 2
    s_add_u32 s{sT0}, s{sT0}, s{w}
    s_mul_i32 s{sT0}, s{sT0}, 114688
    s_lshl_b32 s{sT1}, s{sNJ}, 13
    s_add_u32 s{sT0}, s{sT0}, s{sT1}
    v_lshlrev_b32 v{vAD}, 4, v1
    v_add_u32 v{vAD}, s{sT0}, v{vAD}
    """)
    vE, vP = vA, vA + 16
    for t in range(4):
        a0 = vACC + 16 * t
        for i in range(16): g(f'v_mul_f32 v{a0+i}, v{vRS}, v{a0+i}')
        for i in range(16): g(f'v_exp_f32 v{vE+i}, v{a0+i}')
        for i in range(16): g(f'v_add_f32 v{vE+i}, 1.0, v{vE+i}')
        for i in range(16): g(f'v_fma_f32 v{vE+i}, v{vE+i}, v{vE+i}, 1.0')
        for i in range(16): g(f'v_rcp_f32 v{vE+i}, v{vE+i}')
        for i in range(16): g(f'v_fma_f32 v{vE+i}, v{vE+i}, -2.0, 1.0')
        for i in range(16): g(f'v_mul_f32 v{vE+i}, v{vE+i}, v{a0+i}')
        for i in range(8): g(f'v_cvt_pk_bf16_f32 v{vP+i}, v{vE+2*i}, v{vE+2*i+1}')
        g(f"""
        s_add_u32 s{sT0}, s{w}, {t}
        s_and_b32 s{sT0}, s{sT0}, 3
        s_lshl_b32 s{sT0}, s{sT0}, 11
        """)
        g(f'buffer_store_dwordx4 v[{vP}:{vP+3}], v{vAD}, {srd(SRD_WS)}, s{sT0} offen{sc}')
        g(f'buffer_store_dwordx4 v[{vP+4}:{vP+7}], v{vAD}, {srd(SRD_WS)}, s{sT0} offen offset:1024{sc}')


CH = 13056
cHA, cHB, cUR = 0, 4160, 8320
C_RED = 2 * CH
C_ZS = C_RED + 16384
LDS2 = C_ZS + 8192
vB = 64
vAR = 192
aCV = 224

def conv_load(g, base=0, fused=False):
    w = sW
    sc = ' sc1' if fused else ''
    t = vT
    g(f"""
    s_lshr_b32 s59, s{w}, 1
    s_and_b32 s61, s{w}, 1
    s_lshl_b32 s60, s2, 1
    s_add_u32 s60, s60, s59
    s_lshl_b32 s{sT0}, s60, 12
    s_lshl_b32 s{sT1}, s61, 11
    s_add_u32 s{sT0}, s{sT0}, s{sT1}
    v_lshlrev_b32 v{t}, 4, v1
    v_add_u32 v{t}, s{sT0}, v{t}
    v_add_u32 v{t+1}, 4, v{t}
    v_add_u32 v{t+2}, {UR_OFF}, v{t}
    buffer_load_dwordx4 v[{vB}:{vB+3}], v{t}, {srd(SRD_H)}, 0 offen{pol('h')}
    buffer_load_dwordx4 v[{vB+4}:{vB+7}], v{t}, {srd(SRD_H)}, 0 offen offset:1024{pol('h')}
    buffer_load_dwordx4 v[{vB+8}:{vB+11}], v{t+1}, {srd(SRD_H)}, 0 offen{pol('h')}
    buffer_load_dwordx4 v[{vB+12}:{vB+15}], v{t+1}, {srd(SRD_H)}, 0 offen offset:1024{pol('h')}
    """)
    tok_h = g.vmark()
    g(f"""
    buffer_load_dwordx4 v[{vB+16}:{vB+19}], v{t+2}, {srd(SRD_WS)}, 0 offen{sc}
    buffer_load_dwordx4 v[{vB+20}:{vB+23}], v{t+2}, {srd(SRD_WS)}, 0 offen offset:1024{sc}
    """)
    return tok_h, g.vmark()

def conv_fill(g, tok_h, tok_u, base=0):
    w = sW
    t = vT
    g(f"""
    s_mul_i32 s{sT0}, s59, {CH}
    s_add_u32 s62, s{sT0}, {base}
    s_lshl_b32 s{sT1}, s61, 11
    s_add_u32 s{sT0}, s62, s{sT1}
    v_lshlrev_b32 v{t}, 4, v1
    v_add_u32 v{t}, s{sT0}, v{t}
    """)
    g.vwait(tok_h)
    for k in range(4):
        g(f'v_alignbit_b32 v{vB+8+k}, v{vB+8+k}, v{vB+k}, 16')
        g(f'v_alignbit_b32 v{vB+12+k}, v{vB+12+k}, v{vB+4+k}, 16')
    g(f"""
    ds_write_b128 v{t}, v[{vB}:{vB+3}] offset:{cHA+32}
    ds_write_b128 v{t}, v[{vB+4}:{vB+7}] offset:{cHA+32+1024}
    ds_write_b128 v{t}, v[{vB+8}:{vB+11}] offset:{cHB+32}
    ds_write_b128 v{t}, v[{vB+12}:{vB+15}] offset:{cHB+32+1024}
    v_readfirstlane_b32 s{sT2}, v{vB}
    v_mov_b32 v{vB+24}, 0
    v_mov_b32 v{vB+25}, 0
    v_mov_b32 v{vB+26}, 0
    v_mov_b32 v{vB+27}, 0
    v_lshlrev_b32 v{t+1}, 4, v1
    v_add_u32 v{t+1}, s62, v{t+1}
    s_lshl_b32 s{sT2}, s{sT2}, 16
    s_cmp_eq_u32 s61, 0
    s_cbranch_scc0 L_cv_par1
    s_mov_b64 exec, 3
    ds_write_b128 v{t+1}, v[{vB+24}:{vB+27}] offset:{cHA}
    v_cmp_eq_u32 vcc, 1, v1
    v_mov_b32 v{vB+28}, s{sT2}
    v_cndmask_b32 v{vB+27}, 0, v{vB+28}, vcc
    ds_write_b128 v{t+1}, v[{vB+24}:{vB+27}] offset:{cHB}
    s_mov_b64 exec, -1
    s_branch L_cv_join
    L_cv_par1:
    s_mov_b64 exec, 0x3fffffff
    ds_write_b128 v{t+1}, v[{vB+24}:{vB+27}] offset:{cUR+4096}
    s_mov_b64 exec, -1
    L_cv_join:
    """)
    g.vwait(tok_u)
    g(f"""
    ds_write_b128 v{t}, v[{vB+16}:{vB+19}] offset:{cUR}
    ds_write_b128 v{t}, v[{vB+20}:{vB+23}] offset:{cUR+1024}
    """)

def conv_main(g, base=0, filler=None):
    w = sW
    t = vT
    vAA = t + 2
    vBA = t + 6
    i_odd = t
    g(f"""
    v_and_b32 v{t}, 15, v1
    v_add_u32 v{t+1}, 1, v{t}
    v_lshrrev_b32 v{t+1}, 1, v{t+1}
    v_lshrrev_b32 v{vBA}, 4, v1
    v_lshl_add_u32 v{t+1}, v{vBA}, 2, v{t+1}
    v_lshlrev_b32 v{t+1}, 2, v{t+1}
    v_and_b32 v{vAA}, 1, v1
    v_cmp_eq_u32 vcc, 0, v{vAA}
    v_mov_b32 v{vAA+1}, {cHB}
    v_cndmask_b32 v{vAA}, 0, v{vAA+1}, vcc
    s_lshl_b32 s{sT1}, s61, 6
    s_add_u32 s{sT0}, s62, s{sT1}
    v_add3_u32 v{vAA}, v{vAA}, v{t+1}, s{sT0}
    v_add_u32 v{vAA+1}, 1024, v{vAA}
    v_add_u32 v{vAA+2}, 2048, v{vAA}
    v_add_u32 v{vAA+3}, 3072, v{vAA}
    v_lshlrev_b32 v{vBA}, 4, v{vBA}
    v_lshlrev_b32 v{t}, 5, v{t}
    v_sub_u32 v{vBA}, v{vBA}, v{t}
    s_add_u32 s{sT0}, s{sT0}, {cUR + 480}
    v_add_u32 v{vBA}, s{sT0}, v{vBA}
    s_waitcnt lgkmcnt(0)
    s_barrier
    """)
    def rdA(m):
        d = vAR + 4 * (m & 3); a = vAA + (m >> 3); o = 32 * (m & 7)
        return [f'ds_read2_b32 v[{d}:{d+1}], v{a} offset0:{o} offset1:{o+1}',
                f'ds_read2_b32 v[{d+2}:{d+3}], v{a} offset0:{o+2} offset1:{o+3}']
    def rdB(phi):
        d = vB + 4 * phi
        return f'ds_read_b128 v[{d}:{d+3}], v{vBA} offset:{128*phi}'
    tokA = {}; tokB = {}
    def issueA(m):
        for r in rdA(m): g(r)
        tokA[m] = g.lmark()
    issueA(0)
    for j in range(7, -1, -1):
        g(rdB(28 - 4 * j)); tokB[28 - 4 * j] = g.lmark()
    issueA(1)
    for m in range(32):
        js = list(range(7, (m >> 2) - 1, -1))
        pre = []
        if m + 1 <= 3:
            pre = [('B', m + 1 + 28 - 4 * j) for j in range(7, -1, -1)]
        if m + 2 < 32: pre = [('A', m + 2)] + pre if m + 1 > 3 else pre[:2] + [('A', m + 2)] + pre[2:]
        waited = -1
        for idx, j in enumerate(js):
            phi = m - 4 * j + 28
            need = max(tokA[m], tokB[phi])
            if need > waited:
                g.lwait(need); waited = need
            d = vAR + 4 * (m & 3)
            acc = ar(aCV + 4 * j, 4)
            c = '0' if m == 0 else acc
            g(f'v_mfma_f32_16x16x32_bf16 {acc}, v[{d}:{d+3}], v[{vB+4*phi}:{vB+4*phi+3}], {c}')
            n = -(-len(pre) // (len(js) - idx)) if pre else 0
            for _ in range(n):
                kind, x = pre.pop(0)
                if kind == 'A': issueA(x)
                else:
                    g(rdB(x)); tokB[x] = g.lmark()
            if filler: filler(g)

def conv_epilogue(g, base=0, fused=False):
    w = sW
    t = vT
    sc = ' sc1' if fused else ''
    g(f"""
    s_lshl_b32 s{sT0}, s{w}, 12
    s_add_u32 s{sT0}, s{sT0}, {base + C_RED}
    v_lshlrev_b32 v{t}, 4, v1
    v_add_u32 v{t+1}, s{sT0}, v{t}
    s_xor_b32 s{sT1}, s{w}, 1
    s_lshl_b32 s{sT1}, s{sT1}, 12
    s_add_u32 s{sT1}, s{sT1}, {base + C_RED}
    v_add_u32 v{t+2}, s{sT1}, v{t}
    s_cmp_eq_u32 s61, 0
    s_cbranch_scc0 L_cv_e1
    """)
    for jj in range(4):
        g(f'ds_write_b128 v{t+1}, {ar(aCV+16+4*jj, 4)} offset:{1024*jj}')
    for r in range(16):
        g(f'v_accvgpr_read_b32 v{vB+r}, a{aCV+r}')
    g('s_branch L_cv_e2\nL_cv_e1:')
    for jj in range(4):
        g(f'ds_write_b128 v{t+1}, {ar(aCV+4*jj, 4)} offset:{1024*jj}')
    for r in range(16):
        g(f'v_accvgpr_read_b32 v{vB+r}, a{aCV+16+r}')
    g('L_cv_e2:')
    g.lg -= 4
    g(f"""
    v_and_b32 v{t+3}, 15, v1
    v_lshlrev_b32 v{t+3}, 5, v{t+3}
    v_lshrrev_b32 v{t+4}, 4, v1
    v_lshl_add_u32 v{t+3}, v{t+4}, 3, v{t+3}
    s_lshl_b32 s{sT0}, s61, 11
    s_sub_u32 s{sT0}, s62, s{sT0}
    s_add_u32 s{sT0}, s{sT0}, {cUR + 4088 - 1536}
    v_sub_u32 v{t+4}, s{sT0}, v{t+3}
    """)
    for jj in range(4):
        g(f'ds_read_b64 v[{vB+32+2*jj}:{vB+33+2*jj}], v{t+4} offset:{512*(3-jj)}')
    g('s_waitcnt lgkmcnt(0)\ns_barrier')
    for jj in range(4):
        g(f'ds_read_b128 v[{vB+16+4*jj}:{vB+19+4*jj}], v{t+2} offset:{1024*jj}')
    for jj in range(4):
        u0, u1 = vB + 32 + 2 * jj, vB + 33 + 2 * jj
        o = vB + 40 + 4 * jj
        g(f"""
        v_and_b32 v{o}, 0xffff0000, v{u1}
        v_lshlrev_b32 v{o+1}, 16, v{u1}
        v_and_b32 v{o+2}, 0xffff0000, v{u0}
        v_lshlrev_b32 v{o+3}, 16, v{u0}
        """)
    for r in range(16):
        g(f'v_fmac_f32 v{vB+r}, s63, v{vB+40+r}')
    g('s_waitcnt lgkmcnt(0)')
    for r in range(16):
        g(f'v_add_f32 v{vB+r}, v{vB+r}, v{vB+16+r}')
    for jj in range(4):
        g(f'v_cvt_pk_bf16_f32 v{vB+32+2*jj}, v{vB+4*jj}, v{vB+4*jj+1}')
        g(f'v_cvt_pk_bf16_f32 v{vB+33+2*jj}, v{vB+4*jj+2}, v{vB+4*jj+3}')
    g(f"""
    s_lshl_b32 s{sT0}, s{w}, 11
    s_add_u32 s{sT0}, s{sT0}, {base + C_ZS}
    v_add_u32 v{t+3}, s{sT0}, v{t+3}
    v_add_u32 v{t}, s{sT0}, v{t}
    """)
    for jj in range(4):
        g(f'ds_write_b64 v{t+3}, v[{vB+32+2*jj}:{vB+33+2*jj}] offset:{512*jj}')
    g(f"""
    s_lshl_b32 s{sT0}, s60, 12
    s_lshl_b32 s{sT1}, s61, 11
    s_add_u32 s{sT0}, s{sT0}, s{sT1}
    s_add_u32 s{sT0}, s{sT0}, {Z_OFF}
    v_lshlrev_b32 v{t+1}, 4, v1
    v_add_u32 v{t+1}, s{sT0}, v{t+1}
    s_waitcnt lgkmcnt(0)
    ds_read_b128 v[{vB}:{vB+3}], v{t}
    ds_read_b128 v[{vB+4}:{vB+7}], v{t} offset:1024
    s_waitcnt lgkmcnt(1)
    buffer_store_dwordx4 v[{vB}:{vB+3}], v{t+1}, {srd(SRD_WS)}, 0 offen{sc}
    s_waitcnt lgkmcnt(0)
    buffer_store_dwordx4 v[{vB+4}:{vB+7}], v{t+1}, {srd(SRD_WS)}, 0 offen offset:1024{sc}
    """)

def load_D(g):
    g(f"""
    s_lshl_b32 s{sT0}, s2, 2
    s_load_dword s63, s[{pDD}:{pDD+1}], s{sT0}
    s_waitcnt lgkmcnt(0)
    s_lshr_b32 s{sT1}, s{sW}, 1
    s_cmp_eq_u32 s{sT1}, 0
    s_cbranch_scc0 L_dhi
    s_lshl_b32 s63, s63, 16
    L_dhi:
    s_and_b32 s63, s63, 0xffff0000
    """)

def phase2(g):
    load_D(g)
    th, tu = conv_load(g)
    stamp(g, 0)
    conv_fill(g, th, tu)
    stamp(g, 1)
    conv_main(g)
    stamp(g, 2)
    conv_epilogue(g)
    stamp(g, 3)

W2R = 0
G2_RED = 0
XT = 65536
ZT = XT + 8192
LDS3 = ZT + 8192
vACC2 = 64
vACT = 128
NRING = 8

def w2_setup(g, ring_base):
    w = sW; t = vT
    vWD2, vWR2 = 32, 33
    g(f"""
    v_lshrrev_b32 v{t}, 3, v1
    s_mul_i32 s{sT0}, s{w}, {28*16}
    v_add_u32 v{t}, s{sT0}, v{t}
    v_mul_u32_u24 v{t}, 896, v{t}
    v_and_b32 v{t+1}, 7, v1
    v_bfe_u32 v{t+2}, v1, 4, 1
    v_lshlrev_b32 v{t+2}, 2, v{t+2}
    v_xor_b32 v{t+1}, v{t+1}, v{t+2}
    v_lshl_add_u32 v{t}, v{t+1}, 4, v{t}
    s_lshl_b32 s{sT0}, s{sNC}, 7
    v_add_u32 v{vWD2}, s{sT0}, v{t}
    s_mul_i32 s58, s{w}, {NRING*2048}
    s_add_u32 s58, s58, {ring_base}
    v_bfe_u32 v{t}, v1, 2, 2
    v_lshrrev_b32 v{t+1}, 5, v1
    v_lshl_add_u32 v{t+1}, v{t+1}, 2, v{t}
    v_lshlrev_b32 v{t+1}, 7, v{t+1}
    v_bfe_u32 v{t+2}, v1, 4, 1
    v_lshlrev_b32 v{t+2}, 5, v{t+2}
    v_and_b32 v{t+3}, 3, v1
    v_lshl_add_u32 v{t+2}, v{t+3}, 3, v{t+2}
    v_add3_u32 v{t+1}, v{t+1}, v{t+2}, s58
    v_lshrrev_b32 v{t}, 1, v{t}
    s_and_b32 s{sT0}, s{w}, 1
    v_xor_b32 v{t}, s{sT0}, v{t}
    v_lshl_add_u32 v{vWR2}, v{t}, 6, v{t+1}
    v_xor_b32 v{t}, 1, v{t}
    v_lshl_add_u32 v{vWR2+1}, v{t}, 6, v{t+1}
    """)
    return vWD2, vWR2

def w2_dma(ks, vWD2):
    sl = ks % NRING
    return [[f's_add_u32 m0, s58, {sl*2048 + q*1024}',
             f's_mov_b32 s{sT5}, {(16*ks + 8*q)*896}',
             f'buffer_load_dwordx4 v{vWD2}, {srd(SRD_W2)}, s{sT5} offen{pol("w2")} lds'] for q in range(2)]

def w2_reads(ks, vWR2):
    sl = ks % NRING
    L = []
    for dl in range(2):
        a = 8 * ks + 4 * dl
        L.append(f'ds_read_b64_tr_b16 {ar(a, 2)}, v{vWR2+dl} offset:{sl*2048}')
        L.append(f'ds_read_b64_tr_b16 {ar(a+2, 2)}, v{vWR2+dl} offset:{sl*2048+1024}')
    return L

def act_addr(g):
    w = sW; t = vT
    g(f"""
    s_lshr_b32 s{sT0}, s{w}, 1
    s_lshl_b32 s{sT1}, s{sM2}, 1
    s_add_u32 s{sT2}, s{sT1}, s{sT0}
    s_xor_b32 s{sT0}, s{sT0}, 1
    s_add_u32 s{sT1}, s{sT1}, s{sT0}
    s_mul_i32 s{sT2}, s{sT2}, 114688
    s_mul_i32 s{sT1}, s{sT1}, 114688
    s_mul_i32 s{sT0}, s{w}, {28*1024}
    s_add_u32 s{sT2}, s{sT2}, s{sT0}
    s_add_u32 s{sT1}, s{sT1}, s{sT0}
    v_lshlrev_b32 v{t}, 4, v1
    v_add_u32 v46, s{sT2}, v{t}
    v_add_u32 v47, s{sT1}, v{t}
    """)

def act_load(ks, beta, sc):
    slot = (2 * ks + beta) % 32
    d = vACT + 4 * slot
    return [f's_mov_b32 s{sT4}, {(ks >> 2) * 4096}',
            f'buffer_load_dwordx4 v[{d}:{d+3}], v{46+beta}, {srd(SRD_WS)}, s{sT4} offen offset:{(ks & 3)*1024}{sc}']

def final_loads(g, fused):
    w = sW; t = vT
    g(f"""
    v_lshrrev_b32 v{t}, 3, v1
    s_lshl_b32 s{sT0}, s{sM2}, 6
    s_lshl_b32 s{sT1}, s{w}, 4
    s_add_u32 s{sT0}, s{sT0}, s{sT1}
    v_add_u32 v{t}, s{sT0}, v{t}
    v_mul_u32_u24 v{t}, 896, v{t}
    s_lshl_b32 s{sT0}, s{sNC}, 7
    v_add_u32 v{t}, s{sT0}, v{t}
    v_and_b32 v{t+1}, 7, v1
    v_lshrrev_b32 v{t+2}, 4, v1
    v_xor_b32 v{t+1}, v{t+1}, v{t+2}
    v_lshl_add_u32 v36, v{t+1}, 4, v{t}
    v_xor_b32 v{t+1}, 4, v{t+1}
    v_lshl_add_u32 v37, v{t+1}, 4, v{t}
    v_add_u32 v37, {8*896}, v37
    s_lshl_b32 s{sT2}, s{w}, 11
    s_add_u32 m0, s{sT2}, {XT}
    s_nop 0
    buffer_load_dwordx4 v36, {srd(SRD_Q)}, 0 offen lds
    s_add_u32 m0, s{sT2}, {XT+1024}
    s_nop 0
    buffer_load_dwordx4 v37, {srd(SRD_Q)}, 0 offen lds
    """)

def z_load(g, fused):
    w = sW; t = vT
    sc = ' sc1' if fused else ''
    g(f"""
    v_lshrrev_b32 v{t}, 3, v1
    s_lshl_b32 s{sT0}, s{sNC}, 6
    s_lshl_b32 s{sT1}, s{w}, 4
    s_add_u32 s{sT0}, s{sT0}, s{sT1}
    v_add_u32 v{t}, s{sT0}, v{t}
    v_lshlrev_b32 v{t}, 12, v{t}
    v_and_b32 v{t+1}, 7, v1
    v_lshl_add_u32 v{t}, v{t+1}, 4, v{t}
    s_lshl_b32 s{sT0}, s{sM2}, 7
    s_add_u32 s{sT0}, s{sT0}, {Z_OFF}
    v_add_u32 v{t}, s{sT0}, v{t}
    v_add_u32 v{t+1}, {8*4096}, v{t}
    s_lshl_b32 s{sT2}, s{w}, 11
    s_add_u32 m0, s{sT2}, {ZT}
    s_nop 0
    buffer_load_dwordx4 v{t}, {srd(SRD_WS)}, 0 offen{sc} lds
    s_add_u32 m0, s{sT2}, {ZT+1024}
    s_nop 0
    buffer_load_dwordx4 v{t+1}, {srd(SRD_WS)}, 0 offen{sc} lds
    """)

def gemm2_main(g, sc, atok):
    tk = atok
    for ks in range(28):
        g.vwait(tk[(ks, 1)])
        for dl in range(2):
            for beta in range(2):
                acc = vr(vACC2 + 16 * (dl + 2 * beta), 16)
                slot = (2 * ks + beta) % 32
                c = '0' if ks == 0 else acc
                g(f'v_mfma_f32_32x32x16_bf16 {acc}, {ar(8*ks + 4*dl, 4)}, v[{vACT+4*slot}:{vACT+4*slot+3}], {c}')
        if ks + 16 < 28:
            for beta in range(2):
                g('\n'.join(act_load(ks + 16, beta, sc))); tk[(ks + 16, beta)] = g.vmark()

def gemm2_final(g, fused):
    w = sW; t = vT
    g(f"""
    v_lshlrev_b32 v{t}, 4, v1
    s_barrier
    """)
    for sig in range(3):
        x = sig + 1
        g(f"""
        s_xor_b32 s{sT0}, s{w}, {x}
        s_mul_i32 s{sT0}, s{sT0}, 12288
        s_add_u32 s{sT0}, s{sT0}, {G2_RED + sig*4096}
        v_add_u32 v{t+1+sig}, s{sT0}, v{t}
        """)
        for qd in range(4):
            a = vACC2 + 16 * x + 4 * qd
            g(f'ds_write_b128 v{t+1+sig}, v[{a}:{a+3}] offset:{1024*qd}')
    g(f"""
    s_lshr_b32 s{sT2}, s{w}, 1
    s_and_b32 s{sT3}, s{w}, 1
    v_and_b32 v{t+4}, 31, v1
    s_lshl_b32 s{sT0}, s{sT2}, 5
    v_add_u32 v{t+5}, s{sT0}, v{t+4}
    v_lshlrev_b32 v{t+6}, 7, v{t+5}
    v_lshrrev_b32 v{t+7}, 5, v1
    v_lshl_add_u32 v{t+6}, v{t+7}, 3, v{t+6}
    v_add_u32 v{t+6}, {XT}, v{t+6}
    v_bfe_u32 v{t+8}, v1, 1, 3
    s_lshl_b32 s{sT0}, s{sT3}, 2
    v_xor_b32 v{t+8}, s{sT0}, v{t+8}
    """)
    vXA = 38
    for jj in range(4):
        g(f"""
        v_xor_b32 v{t+9}, {jj}, v{t+8}
        v_lshl_add_u32 v{vXA+jj}, v{t+9}, 4, v{t+6}
        """)
    g(f"""
    v_bfe_u32 v{t+8}, v1, 2, 2
    v_lshl_add_u32 v{t+8}, v{t+7}, 2, v{t+8}
    s_lshl_b32 s{sT0}, s{sT3}, 5
    v_add_u32 v{t+8}, s{sT0}, v{t+8}
    v_lshlrev_b32 v{t+8}, 7, v{t+8}
    v_bfe_u32 v{t+9}, v1, 4, 1
    v_lshlrev_b32 v{t+9}, 5, v{t+9}
    v_and_b32 v{t+10}, 3, v1
    v_lshl_add_u32 v{t+9}, v{t+10}, 3, v{t+9}
    s_lshl_b32 s{sT0}, s{sT2}, 6
    s_add_u32 s{sT0}, s{sT0}, {ZT}
    v_add3_u32 v42, v{t+8}, v{t+9}, s{sT0}
    """)
    if fused:
        g(f"""
        s_and_b32 s{sT0}, s{sM2}, 1
        s_lshl_b32 s{sT0}, s{sT0}, 9
        s_add_u32 s{sT0}, s{sT0}, {ST}
        v_lshlrev_b32 v{t+5}, 3, v{t+5}
        v_add_u32 v{t+5}, s{sT0}, v{t+5}
        ds_read_b64 v[44:45], v{t+5}
        """)
    g('s_waitcnt lgkmcnt(0)')
    g('s_barrier')
    g(f"""
    s_mul_i32 s{sT0}, s{w}, 12288
    s_add_u32 s{sT0}, s{sT0}, {G2_RED}
    v_add_u32 v{t+1}, s{sT0}, v{t}
    """)
    R = vACT
    for sig in range(3):
        for qd in range(4):
            a = R + 16 * sig + 4 * qd
            g(f'ds_read_b128 v[{a}:{a+3}], v{t+1} offset:{sig*4096 + qd*1024}')
    XR, ZR = vACT + 48, vACT + 56
    for jj in range(4):
        g(f'ds_read_b64 v[{XR+2*jj}:{XR+2*jj+1}], v{vXA+jj}')
    tz = g.lmark()
    A = vACC2
    g('s_waitcnt lgkmcnt(12)')
    for r in range(16): g(f'v_add_f32 v{A+r}, v{A+r}, v{R+r}')
    for jj in range(4):
        g(f'ds_read_b64_tr_b16 v[{ZR+2*jj}:{ZR+2*jj+1}], v42 offset:{jj*1024}')
    g('s_waitcnt lgkmcnt(12)')
    for r in range(16): g(f'v_add_f32 v{A+r}, v{A+r}, v{R+16+r}')
    g('s_waitcnt lgkmcnt(8)')
    for r in range(16): g(f'v_add_f32 v{A+r}, v{A+r}, v{R+32+r}')
    g('s_waitcnt lgkmcnt(0)')
    XF, ZF = vACT, vACT + 16
    for jj in range(4):
        for p in range(2):
            g(f'v_lshlrev_b32 v{XF+4*jj+2*p}, 16, v{XR+2*jj+p}')
            g(f'v_and_b32 v{XF+4*jj+2*p+1}, 0xffff0000, v{XR+2*jj+p}')
            g(f'v_lshlrev_b32 v{ZF+4*jj+2*p}, 16, v{ZR+2*jj+p}')
            g(f'v_and_b32 v{ZF+4*jj+2*p+1}, 0xffff0000, v{ZR+2*jj+p}')
    g(f's_mov_b32 s{sT0}, {LN2:#x}')
    for r in range(16): g(f'v_fma_f32 v{A+r}, v{A+r}, s{sT0}, v{XF+r}')
    for r in range(16): g(f'v_sub_f32 v{XF+r}, v{XF+r}, v44')
    for r in range(16): g(f'v_mul_f32 v{ZF+r}, v{ZF+r}, v45')
    for r in range(16): g(f'v_fmac_f32 v{A+r}, v{XF+r}, v{ZF+r}')
    for jj in range(4):
        g(f'v_cvt_pk_bf16_f32 v{XR+2*jj}, v{A+4*jj}, v{A+4*jj+1}')
        g(f'v_cvt_pk_bf16_f32 v{XR+2*jj+1}, v{A+4*jj+2}, v{A+4*jj+3}')
    for jj in range(4):
        g(f'ds_write_b64 v{vXA+jj}, v[{XR+2*jj}:{XR+2*jj+1}]')
    g(f"""
    s_lshl_b32 s{sT0}, s{w}, 11
    s_add_u32 s{sT0}, s{sT0}, {XT}
    v_add_u32 v{t}, s{sT0}, v{t}
    s_waitcnt lgkmcnt(0)
    s_barrier
    ds_read_b128 v[{R}:{R+3}], v{t}
    ds_read_b128 v[{R+4}:{R+7}], v{t} offset:1024
    s_waitcnt lgkmcnt(1)
    buffer_store_dwordx4 v[{R}:{R+3}], v36, {srd(SRD_OUT)}, 0 offen
    s_waitcnt lgkmcnt(0)
    buffer_store_dwordx4 v[{R+4}:{R+7}], v37, {srd(SRD_OUT)}, 0 offen
    """)

def phase3(g):
    w = sW; t = vT
    vWD2, vWR2 = w2_setup(g, W2R)
    act_addr(g)
    vtok = {}
    for ks in range(NRING):
        for p in w2_dma(ks, vWD2): g('\n'.join(p))
        vtok[ks] = g.vmark()
    final_loads(g, False)
    z_load(g, False)
    g(f"""
    s_lshr_b32 s{sT2}, s{w}, 1
    s_lshl_b32 s{sT2}, s{sT2}, 5
    s_lshl_b32 s{sT0}, s{sM2}, 6
    s_add_u32 s{sT0}, s{sT0}, s{sT2}
    v_and_b32 v{t}, 31, v1
    v_add_u32 v{t}, s{sT0}, v{t}
    v_lshlrev_b32 v{t}, 3, v{t}
    s_mov_b32 s{sT0}, {ST_OFF}
    buffer_load_dwordx2 v[44:45], v{t}, {srd(SRD_WS)}, s{sT0} offen
    """)
    atok = {}
    for ks in range(16):
        for beta in range(2):
            g('\n'.join(act_load(ks, beta, ''))); atok[(ks, beta)] = g.vmark()
    prev = None
    stamp(g, 0)
    for ks in range(28):
        g.vwait(vtok[ks])
        if ks == 0: stamp(g, 1)
        for r in w2_reads(ks, vWR2): g(r)
        cur = g.lmark()
        if prev is not None and ks - 1 + NRING < 28:
            g.lwait(prev)
            for p in w2_dma(ks - 1 + NRING, vWD2): g('\n'.join(p))
            vtok[ks - 1 + NRING] = g.vmark()
        prev = cur
    g('s_waitcnt lgkmcnt(0)')
    stamp(g, 2)
    gemm2_main(g, '', atok)
    g('s_waitcnt vmcnt(0)')
    stamp(g, 3)
    gemm2_final(g, False)
    stamp(g, 4)

def kernel_wrap(label, body, vgprs=512, accum=256):
    return f"""
.text
.globl {label}
.p2align 8
.type {label},@function
{label}:
{body}
.section .rodata,"a"
.p2align 6
.amdhsa_kernel {label}
  .amdhsa_next_free_vgpr {vgprs}
  .amdhsa_next_free_sgpr 96
  .amdhsa_accum_offset {accum}
  .amdhsa_group_segment_fixed_size 0
  .amdhsa_kernarg_size 104
  .amdhsa_user_sgpr_count 2
  .amdhsa_user_sgpr_kernarg_segment_ptr 1
  .amdhsa_system_sgpr_workgroup_id_x 1
.end_amdhsa_kernel
"""

def make_kernel(label, tag, fn, slot=0):
    g = Gen()
    prologue(g, tag)
    fn(g)
    stamp_flush(g, slot)
    dbg_flush(g, slot)
    g(f'L_end_{tag}:\ns_endpgm')
    body, n = g.text()
    return kernel_wrap(label, body), n

def multi3():
    k1, _ = make_kernel('p1_kernel', 'p1', lambda g: phase1(g, False))
    k2, _ = make_kernel('p2_kernel', 'p2', phase2, 1)
    k3, _ = make_kernel('p3_kernel', 'p3', phase3, 2)
    return k1 + k2 + k3

if __name__ == '__main__':
    print(multi3())
```

```python
import sys
from asmlib import Gen

NAME = 'parallel_sum__ssm_conv_h3__dense_activation_mish__prompt'
S, D, F = 2048, 448, 1792
NWG = 224
ACT_OFF = 0
UR_OFF = 8 << 20
Z_OFF = 10 << 20
FLAG_OFF = 12 << 20
EPOCH = FLAG_OFF
FU = FLAG_OFF + 4096
FA = FLAG_OFF + 8192
FZ = FLAG_OFF + 16384
STAMP_OFF = FLAG_OFF + 65536
WS_USED = 13 << 20
sW, sM2, sNC, sMT, sNJ = 4, 5, 6, 7, 8
SRD_Q, SRD_K, SRD_V, SRD_W1, SRD_WS, SRD_W2, SRD_H, SRD_OUT = 12, 16, 20, 24, 28, 32, 36, 40
pSK, pDD, pB1 = 44, 46, 48
sTAG, sDV = 50, 51
sT0, sT1, sT2, sT3, sT4, sT5 = 52, 53, 54, 55, 56, 57
sRB, sSX, sSW, sM0 = 58, 59, 60, 61
sCNT = 62
sMK = 84
sCC, sCH, sPAR, sCB = 94, 95, 96, 97
LOG2E = 0x3fb8aa3b
LN2 = 0x3f317218
SPIN_LIMIT = 1 << 16

class Opt:
    stamps = False
    map2 = True
    pol = dict(k='', v='', q='', w1='', w2='', h='')
O = Opt
def pol(x): return (' ' + O.pol[x]) if O.pol[x] else ''
def srd(n): return 's[%d:%d]' % (n, n + 3)
def vr(a, n=1): return 'v%d' % a if n == 1 else 'v[%d:%d]' % (a, a + n - 1)
def ar(a, n=1): return 'a%d' % a if n == 1 else 'a[%d:%d]' % (a, a + n - 1)

G1_SLOT = 32768
NSLOT = 3
PK = NSLOT * G1_SLOT
PV = PK + 9216
PU = PV + 8192
EX = PU + 8192
ST = EX + 1024
XT = ST + 1024
ZT = XT + 8192
LDS_TOTAL = ZT + 8192
W2R = 0
NRING = 8
CVB = 65536
CH = 13056
cHA, cHB, cUR = 0, 4160, 8320
C_RED = CVB + 2 * CH
C_ZS = C_RED + 16384
assert C_ZS + 8192 <= EX
G2_RED = 0
vXD0, vXD1, vWD, vB1 = 2, 3, 4, 5
vXR, vWR = 6, 10
vT = 14
vWD2, vWR2 = 32, 33
vOA = 36
vXA = 38
vZA = 42
vST = 44
vAA2 = 46
vRS = 48
vFL = 50
vFA = 52
vEP = 53
vACC = 64
vX, vC, vA, vS, vONE = 128, 144, 160, 184, 208
vKP, vVP, vSKP, vSK, vKF, vO, vPK = 160, 170, 178, 180, 210, 230, 246
vHB = 212
vUA = 54
vB = 64
vAR = 192
aCV = 224
vACT = 128

def stamp(g, i):
    if not O.stamps: return
    g(f"""
    s_waitcnt lgkmcnt(0)
    s_memtime s[{64+2*i}:{65+2*i}]
    s_waitcnt lgkmcnt(0)
    """)

def stamp_flush(g):
    if not O.stamps: return
    g(f"""
    s_waitcnt vmcnt(0) lgkmcnt(0)
    s_memtime s[10:11]
    s_memrealtime s[98:99]
    s_waitcnt lgkmcnt(0)
    s_cmp_lg_u32 s{sW}, 0
    s_cbranch_scc1 L_nostamp
    s_lshl_b32 s{sT0}, s2, 6
    s_add_u32 s{sT0}, s{sT0}, {STAMP_OFF}
    v_mov_b32 v2, s{sT0}
    """)
    for i in range(10): g(f'v_mov_b32 v{4+i}, s{64+2*i}')
    g(f"""
    v_mov_b32 v14, 0
    v_mov_b32 v15, 0
    v_mov_b32 v16, s92
    v_mov_b32 v17, s10
    v_mov_b32 v18, s90
    v_mov_b32 v19, s98
    s_mov_b64 exec, 1
    buffer_store_dwordx4 v[4:7], v2, {srd(SRD_WS)}, 0 offen
    buffer_store_dwordx4 v[8:11], v2, {srd(SRD_WS)}, 0 offen offset:16
    buffer_store_dwordx4 v[12:15], v2, {srd(SRD_WS)}, 0 offen offset:32
    buffer_store_dwordx4 v[16:19], v2, {srd(SRD_WS)}, 0 offen offset:48
    s_waitcnt vmcnt(0)
    L_nostamp:
    """)

class uncounted:
    def __init__(self, g): self.g = g
    def __enter__(self): self.vm, self.lg = self.g.vm, self.g.lg
    def __exit__(self, *a): self.g.vm, self.g.lg = self.vm, self.lg

def mk_srd(g, n, lo, size):
    g(f"""
    s_mov_b32 s{n}, s{lo}
    s_mov_b32 s{n+1}, s{lo+1}
    s_mov_b32 s{n+2}, {size}
    s_mov_b32 s{n+3}, 0x00020000
    """)

def prologue(g):
    if O.stamps: g('s_memrealtime s[90:91]\ns_memtime s[92:93]')
    g(f"""
    s_cmp_ge_u32 s2, {NWG}
    s_cbranch_scc1 L_end
    s_load_dwordx16 s[64:79], s[0:1], 0
    s_load_dwordx8 s[80:87], s[0:1], 64
    s_load_dwordx2 s[88:89], s[0:1], 96
    v_lshrrev_b32 v2, 6, v0
    v_and_b32 v1, 63, v0
    s_and_b32 s9, s2, 7
    s_lshr_b32 s10, s2, 3
    v_readfirstlane_b32 s{sW}, v2
    s_mul_i32 s11, s10, 37
    s_lshr_b32 s11, s11, 8
    s_mul_i32 s{sNC}, s11, 7
    s_sub_u32 s{sNC}, s10, s{sNC}
    """)
    if O.map2:
        g(f"""
        s_lshr_b32 s{sMT}, s9, 1
        s_lshl_b32 s{sMT}, s{sMT}, 2
        s_add_u32 s{sMT}, s{sMT}, s11
        s_and_b32 s9, s9, 1
        s_mul_i32 s{sNJ}, s9, 7
        s_add_u32 s{sNJ}, s{sNJ}, s{sNC}
        s_lshl_b32 s{sM2}, s{sMT}, 1
        s_add_u32 s{sM2}, s{sM2}, s9
        """)
    else:
        g(f"""
        s_lshl_b32 s{sM2}, s9, 2
        s_add_u32 s{sM2}, s{sM2}, s11
        s_lshr_b32 s{sMT}, s{sM2}, 1
        s_lshr_b32 s11, s11, 1
        s_mul_i32 s11, s11, 14
        s_sub_u32 s{sNJ}, s10, s11
        """)

def prepass_addr(g):
    w = sW
    g(f"""
    v_lshrrev_b32 v{vT}, 3, v1
    v_and_b32 v{vT+1}, 7, v1
    v_lshlrev_b32 v{vT+2}, 4, v{vT+1}
    s_lshl_b32 s{sT0}, s{sM2}, 6
    s_lshl_b32 s{sT1}, s{w}, 4
    s_add_u32 s{sT0}, s{sT0}, s{sT1}
    v_add_u32 v{vT+3}, s{sT0}, v{vT}
    v_mul_u32_u24 v{vT+3}, 896, v{vT+3}
    s_lshl_b32 s{sT1}, s{sNC}, 7
    v_add3_u32 v{vT+3}, v{vT+3}, s{sT1}, v{vT+2}
    v_subrev_u32 v{vT+4}, {8*896}, v{vT+3}
    v_add_u32 v{vT+5}, {8*896}, v{vT+3}
    v_add_u32 v{vT+6}, {56*896}, v{vT+3}
    s_lshl_b32 s{sT2}, s{w}, 11
    v_and_b32 v{vT+7}, 15, v1
    s_lshl_b32 s{sT0}, s{sNC}, 6
    s_lshl_b32 s{sT1}, s{w}, 4
    s_add_u32 s{sT0}, s{sT0}, s{sT1}
    v_add_u32 v{vT+7}, s{sT0}, v{vT+7}
    v_lshlrev_b32 v{vT+7}, 3, v{vT+7}
    """)
    g(f"""
    v_lshrrev_b32 v{vT+8}, 3, v1
    v_lshrrev_b32 v{vT+9}, 4, v1
    v_and_b32 v{vT+10}, 7, v1
    s_lshl_b32 s{sT0}, s{sMT}, 7
    s_lshl_b32 s{sT1}, s{w}, 5
    s_add_u32 s{sT0}, s{sT0}, s{sT1}
    v_add_u32 v{vT+11}, s{sT0}, v{vT+8}
    v_mul_u32_u24 v{vT+11}, 896, v{vT+11}
    v_xor_b32 v{vT+12}, v{vT+10}, v{vT+9}
    v_lshl_add_u32 v{vXD0}, v{vT+12}, 4, v{vT+11}
    v_xor_b32 v{vT+12}, 4, v{vT+12}
    v_lshl_add_u32 v{vXD1}, v{vT+12}, 4, v{vT+11}
    v_add_u32 v{vXD1}, {8*896}, v{vXD1}
    s_lshl_b32 s{sT0}, s{w}, 4
    v_add_u32 v{vT+11}, s{sT0}, v{vT+9}
    v_mul_u32_u24 v{vT+11}, 3584, v{vT+11}
    v_and_b32 v{vT+12}, 15, v1
    v_lshlrev_b32 v{vT+13}, 2, v{vT+9}
    v_xor_b32 v{vT+12}, v{vT+12}, v{vT+13}
    v_lshl_add_u32 v{vT+11}, v{vT+12}, 4, v{vT+11}
    s_lshl_b32 s{sT0}, s{sNJ}, 8
    v_add_u32 v{vWD}, s{sT0}, v{vT+11}
    s_lshl_b32 s{sRB}, s{w}, 12
    :WAITK:
    """.replace(':WAITK:', 's_waitcnt lgkmcnt(0)'))

def prepass_issue(g):
    w = sW
    g(f"""
    s_add_u32 m0, s{sT2}, {PK}
    s_nop 0
    buffer_load_dwordx4 v{vT+4}, {srd(SRD_K)}, 0 offen{pol('k')} lds
    s_add_u32 m0, s{sT2}, {PK+1024}
    s_nop 0
    buffer_load_dwordx4 v{vT+3}, {srd(SRD_K)}, 0 offen{pol('k')} lds
    s_add_u32 m0, s{sT2}, {PV}
    s_nop 0
    buffer_load_dwordx4 v{vT+3}, {srd(SRD_V)}, 0 offen{pol('v')} lds
    s_add_u32 m0, s{sT2}, {PV+1024}
    s_nop 0
    buffer_load_dwordx4 v{vT+5}, {srd(SRD_V)}, 0 offen{pol('v')} lds
    s_cmp_lg_u32 s{w}, 0
    s_cbranch_scc1 L_skipk8
    s_mov_b32 m0, {PK+8192}
    s_nop 0
    """)
    with uncounted(g):
        g(f"buffer_load_dwordx4 v{vT+6}, {srd(SRD_K)}, 0 offen{pol('k')} lds")
    g(f"""
    L_skipk8:
    global_load_dwordx2 v[{vSKP}:{vSKP+1}], v{vT+7}, s[{pSK}:{pSK+1}]
    """)
    return g.vmark()

def g1_pieces(st):
    L = []
    slot = (st % NSLOT) * G1_SLOT
    for q in range(4):
        L.append([f's_add_u32 m0, s{sRB}, {slot + q*1024}',
                  f's_mov_b32 s{sT5}, {st*128 + (q >> 1) * 16 * 896}',
                  f'buffer_load_dwordx4 v{vXD0 + (q & 1)}, {srd(SRD_Q)}, s{sT5} offen{pol("q")} lds'])
    for q in range(4):
        L.append([f's_add_u32 m0, s{sRB}, {slot + 16384 + q*1024}',
                  f's_mov_b32 s{sT5}, {st*64*3584 + q*4*3584}',
                  f'buffer_load_dwordx4 v{vWD}, {srd(SRD_W1)}, s{sT5} offen{pol("w1")} lds'])
    return L

def flag_store(g, base_expr_lines, label):
    g(base_expr_lines)
    g(f"""
    v_mov_b32 v{vT+16}, s{sT0}
    v_mov_b32 v{vT+17}, s{sTAG}
    s_mov_b64 exec, 1
    buffer_store_dword v{vT+17}, v{vT+16}, {srd(SRD_WS)}, 0 offen sc1
    s_mov_b64 exec, -1
    """)

def poll_issue(g, n):
    op = 'buffer_load_dword v%d' % vFL if n == 1 else 'buffer_load_dwordx2 v[%d:%d]' % (vFL, vFL + 1)
    g(f'{op}, v{vFA}, {srd(SRD_WS)}, 0 offen sc1')
    return g.vmark()

def poll_check(g, tok, n, tag):
    op = 'buffer_load_dword v%d' % vFL if n == 1 else 'buffer_load_dwordx2 v[%d:%d]' % (vFL, vFL + 1)
    g.vwait(tok)
    g(f's_mov_b32 s{sCNT}, 0')
    g(f'L_chk_{tag}:')
    g(f'v_cmp_ne_u32 vcc, s{sTAG}, v{vFL}')
    if n == 1: g('s_nop 4')
    if n == 2:
        g(f"""
        v_cmp_ne_u32 s[{sMK}:{sMK+1}], s{sTAG}, v{vFL+1}
        s_or_b64 vcc, vcc, s[{sMK}:{sMK+1}]
        """)
    with uncounted(g):
        g(f"""
        s_cbranch_vccz L_ok_{tag}
        s_add_u32 s{sCNT}, s{sCNT}, 1
        s_cmp_gt_u32 s{sCNT}, {SPIN_LIMIT}
        s_cbranch_scc1 L_ok_{tag}
        s_sleep 4
        {op}, v{vFA}, {srd(SRD_WS)}, 0 offen sc1
        s_waitcnt vmcnt(0)
        s_branch L_chk_{tag}
        L_ok_{tag}:
        """)

def phase1(g):
    w = sW
    prepass_addr(g)
    mk_srd(g, SRD_K, 66, S * D * 2); mk_srd(g, SRD_V, 68, S * D * 2)
    g(f's_mov_b32 s{pSK}, s70\ns_mov_b32 s{pSK+1}, s71')
    tok_pre = prepass_issue(g)
    mk_srd(g, SRD_Q, 64, S * D * 2); mk_srd(g, SRD_W1, 78, D * F * 2); mk_srd(g, SRD_WS, 88, WS_USED)
    toks = []
    g(f"""
    v_mov_b32 v{vT}, {EPOCH}
    buffer_load_dword v{vEP}, v{vT}, {srd(SRD_WS)}, 0 offen sc1
    """)
    tok_ep = g.vmark()
    for p in g1_pieces(0): g('\n'.join(p))
    toks.append(g.vmark())
    mk_srd(g, SRD_W2, 82, F * D * 2); mk_srd(g, SRD_H, 72, D * S * 2); mk_srd(g, SRD_OUT, 84, S * D * 2)
    g(f"""
    s_mov_b32 s{pDD}, s74
    s_mov_b32 s{pDD+1}, s75
    s_mov_b32 s{pB1}, s80
    s_mov_b32 s{pB1+1}, s81
    s_lshl_b32 s{sT0}, s2, 2
    s_load_dword s{sDV}, s[{pDD}:{pDD+1}], s{sT0}
    """)
    stamp(g, 0)
    g(f"""
    v_and_b32 v{vT}, 31, v1
    v_lshrrev_b32 v{vT+1}, 5, v1
    v_bfe_u32 v{vT+2}, v1, 1, 3
    v_lshlrev_b32 v{vT+3}, 7, v{vT}
    v_add_u32 v{vT+3}, s{sRB}, v{vT+3}
    """)
    for ks in range(4):
        g(f"""
        v_or_b32 v{vT+4}, {2*ks}, v{vT+1}
        v_xor_b32 v{vT+4}, v{vT+4}, v{vT+2}
        v_lshl_add_u32 v{vXR+ks}, v{vT+4}, 4, v{vT+3}
        """)
    g(f"""
    v_bfe_u32 v{vT}, v1, 2, 2
    v_lshrrev_b32 v{vT+1}, 5, v1
    v_lshl_add_u32 v{vT+1}, v{vT+1}, 3, v{vT}
    v_lshlrev_b32 v{vT+1}, 8, v{vT+1}
    v_bfe_u32 v{vT+2}, v1, 4, 1
    v_lshlrev_b32 v{vT+2}, 5, v{vT+2}
    v_and_b32 v{vT+3}, 3, v1
    v_lshl_add_u32 v{vT+2}, v{vT+3}, 3, v{vT+2}
    v_add_u32 v{vT+1}, v{vT+1}, v{vT+2}
    v_add_u32 v{vT+1}, 16384, v{vT+1}
    """)
    for t in range(4):
        g(f"""
        s_add_u32 s{sT0}, s{w}, {t}
        s_and_b32 s{sT0}, s{sT0}, 3
        v_xor_b32 v{vT+4}, s{sT0}, v{vT}
        v_lshl_add_u32 v{vWR+t}, v{vT+4}, 6, v{vT+1}
        """)
    g(f"""
    v_mov_b32 v{vONE}, 0x3f803f80
    v_mov_b32 v{vONE+1}, 0x3f803f80
    v_and_b32 v{vT}, 31, v1
    s_lshl_b32 s{sT0}, s{sNJ}, 7
    s_lshl_b32 s{sT1}, s{w}, 5
    s_add_u32 s{sT0}, s{sT0}, s{sT1}
    v_add_u32 v{vT}, s{sT0}, v{vT}
    v_lshlrev_b32 v{vT+5}, 1, v{vT}
    """)
    g(f"""
    v_lshrrev_b32 v{vT}, 4, v1
    v_bfe_u32 v{vT+1}, v1, 2, 2
    v_lshl_add_u32 v{vT+1}, v{vT}, 4, v{vT+1}
    v_lshlrev_b32 v{vT+1}, 7, v{vT+1}
    v_and_b32 v{vT+2}, 3, v1
    v_lshl_add_u32 v{vT+1}, v{vT+2}, 3, v{vT+1}
    s_lshl_b32 s{sT0}, s{w}, 5
    v_add_u32 v{vT+1}, s{sT0}, v{vT+1}
    v_add_u32 v{vT+2}, {PK + 4*128}, v{vT+1}
    v_add_u32 v{vT+3}, {PV}, v{vT+1}
    s_waitcnt lgkmcnt(0)
    s_lshr_b32 s{sT1}, s{w}, 1
    s_cmp_eq_u32 s{sT1}, 0
    s_cselect_b32 s{sT1}, 16, 0
    s_lshl_b32 s{sDV}, s{sDV}, s{sT1}
    s_and_b32 s{sDV}, s{sDV}, 0xffff0000
    """)
    for p in g1_pieces(1): g('\n'.join(p))
    toks.append(g.vmark())
    g(f'global_load_ushort v{vB1}, v{vT+5}, s[{pB1}:{pB1+1}]')
    tok_b1 = g.vmark()
    stamp(g, 1)
    g.vwait(tok_pre)
    g('s_barrier')
    for i in range(5):
        g(f'ds_read_b64_tr_b16 v[{vKP+2*i}:{vKP+2*i+1}], v{vT+2} offset:{512*i}')
    for i in range(4):
        g(f'ds_read_b64_tr_b16 v[{vVP+2*i}:{vVP+2*i+1}], v{vT+3} offset:{512*i}')
    g(f"""
    v_lshlrev_b32 v{vSK}, 16, v{vSKP}
    v_and_b32 v{vSK+1}, 0xffff0000, v{vSKP}
    v_lshlrev_b32 v{vSK+2}, 16, v{vSKP+1}
    v_and_b32 v{vSK+3}, 0xffff0000, v{vSKP+1}
    s_waitcnt lgkmcnt(4)
    """)
    for i in range(10):
        if i > 0: g(f'v_lshlrev_b32 v{vKF+2*i}, 16, v{vKP+i}')
        g(f'v_and_b32 v{vKF+2*i+1}, 0xffff0000, v{vKP+i}')
    for i in range(16): g(f'v_mul_f32 v{vO+i}, v{vSK}, v{vKF+i+4}')
    for j in (1, 2, 3):
        for i in range(16): g(f'v_fmac_f32 v{vO+i}, v{vSK+j}, v{vKF+i+4-j}')
    g('s_waitcnt lgkmcnt(0)')
    for i in range(8):
        g(f'v_lshlrev_b32 v{vKF+2*i}, 16, v{vVP+i}')
        g(f'v_and_b32 v{vKF+2*i+1}, 0xffff0000, v{vVP+i}')
    for i in range(16): g(f'v_mul_f32 v{vO+i}, v{vO+i}, v{vKF+i}')
    for j in range(8): g(f'v_cvt_pk_bf16_f32 v{vPK+j}, v{vO+15-2*j}, v{vO+14-2*j}')
    g(f"""
    v_and_b32 v{vT+1}, 15, v1
    v_lshlrev_b32 v{vT+1}, 7, v{vT+1}
    v_lshlrev_b32 v{vT+2}, 5, v{vT}
    v_sub_u32 v{vT+1}, v{vT+1}, v{vT+2}
    s_lshl_b32 s{sT0}, s{w}, 11
    s_add_u32 s{sT0}, s{sT0}, {PU + 96}
    v_add_u32 v{vT+1}, s{sT0}, v{vT+1}
    ds_write_b128 v{vT+1}, v[{vPK}:{vPK+3}]
    ds_write_b128 v{vT+1}, v[{vPK+4}:{vPK+7}] offset:16
    v_lshlrev_b32 v{vT+2}, 4, v1
    s_sub_u32 s{sT0}, s{sT0}, 96
    v_add_u32 v{vT+2}, s{sT0}, v{vT+2}
    v_lshrrev_b32 v{vT+3}, 3, v1
    s_lshl_b32 s{sT0}, s{sNC}, 6
    s_lshl_b32 s{sT1}, s{w}, 4
    s_add_u32 s{sT0}, s{sT0}, s{sT1}
    v_add_u32 v{vT+3}, s{sT0}, v{vT+3}
    v_lshlrev_b32 v{vT+3}, 12, v{vT+3}
    v_and_b32 v{vT+4}, 7, v1
    v_lshl_add_u32 v{vT+3}, v{vT+4}, 4, v{vT+3}
    s_lshl_b32 s{sT0}, s{sM2}, 7
    s_sub_u32 s{sT0}, {UR_OFF + 4096 - 128}, s{sT0}
    v_add_u32 v{vT+3}, s{sT0}, v{vT+3}
    v_add_u32 v{vT+4}, {8*4096}, v{vT+3}
    s_waitcnt lgkmcnt(0)
    ds_read_b128 v[{vKF}:{vKF+3}], v{vT+2}
    ds_read_b128 v[{vKF+4}:{vKF+7}], v{vT+2} offset:1024
    """)
    g.vwait(tok_ep)
    g(f"""
    v_readfirstlane_b32 s{sTAG}, v{vEP}
    s_waitcnt lgkmcnt(0)
    buffer_store_dwordx4 v[{vKF}:{vKF+3}], v{vT+3}, {srd(SRD_WS)}, 0 offen sc1
    buffer_store_dwordx4 v[{vKF+4}:{vKF+7}], v{vT+4}, {srd(SRD_WS)}, 0 offen sc1
    s_mul_i32 s{sTAG}, s{sTAG}, 0x9e3779b1
    s_add_u32 s{sTAG}, s{sTAG}, 0x7f4a7c15
    """)
    stamp(g, 2)
    def rd_x(ks, so): return [f'ds_read_b128 v[{vX+4*ks}:{vX+4*ks+3}], v{vXR+ks} offset:{so}']
    def rd_a(ks, t, so):
        a = vC + 4 * ks if t == 0 else vA + (ks & 1) * 12 + (t - 1) * 4
        return [f'ds_read_b64_tr_b16 v[{a}:{a+1}], v{vWR+t} offset:{so + ks*4096}',
                f'ds_read_b64_tr_b16 v[{a+2}:{a+3}], v{vWR+t} offset:{so + ks*4096+1024}']
    first_m4 = [True]
    def m4(ks):
        x, c = vX + 4 * ks, vC + 4 * ks
        one = f'v[{vONE}:{vONE+1}]'
        def f(i, a, b):
            acc = f'v[{vS+4*i}:{vS+4*i+3}]'
            return f'v_mfma_f32_4x4x4_16b_bf16 {acc}, {a}, {b}, {"0" if first_m4[0] else acc}'
        x0, x1, c0, c1 = f'v[{x}:{x+1}]', f'v[{x+2}:{x+3}]', f'v[{c}:{c+1}]', f'v[{c+2}:{c+3}]'
        r = [f(0, x0, x0), f(1, x1, x1), f(2, one, x0), f(3, one, x1), f(4, one, c0), f(5, one, c1)]
        first_m4[0] = False
        return r
    def mm(st, ks, t):
        a = f'v[{vC+4*ks}:{vC+4*ks+3}]' if t == 0 else f'v[{vA+(ks&1)*12+(t-1)*4}:{vA+(ks&1)*12+(t-1)*4+3}]'
        acc = f'v[{vACC+16*t}:{vACC+16*t+15}]'
        c = '0' if (st == 0 and ks == 0) else acc
        return f'v_mfma_f32_32x32x16_bf16 {acc}, {a}, v[{vX+4*ks}:{vX+4*ks+3}], {c}'
    cur_base = 0
    tok_fu = None
    for st in range(7):
        slot = (st % NSLOT) * G1_SLOT
        want = 65536 if slot >= 65536 else 0
        if want != cur_base:
            d = (want - cur_base) & 0xffffffff
            for r in list(range(vXR, vXR + 4)) + list(range(vWR, vWR + 4)):
                g(f'v_add_u32 v{r}, {d:#x}, v{r}')
            cur_base = want
        so = slot - want
        g.vwait(toks[st])
        g('s_barrier')
        if st == 0: stamp(g, 3)
        if st == 2:
            flag_store(g, f"""
            s_lshl_b32 s{sT0}, s{sNC}, 9
            s_lshl_b32 s{sT1}, s{sM2}, 4
            s_add_u32 s{sT0}, s{sT0}, s{sT1}
            s_lshl_b32 s{sT1}, s{w}, 2
            s_add_u32 s{sT0}, s{sT0}, s{sT1}
            s_add_u32 s{sT0}, s{sT0}, {FU}
            """, 'fu')
        tok = {}
        for t in (1, 2, 3):
            for r in rd_a(0, t, so): g(r)
            tok[(0, t)] = g.lmark()
        pend = g1_pieces(st + 2) if st + 2 <= 6 else []
        if st >= 1:
            for m in m4(0): g(m)
        for r in rd_x(0, so) + rd_a(0, 0, so): g(r)
        tok[(0, 0)] = g.lmark()
        if st >= 1:
            for ks in (1, 2, 3):
                for m in m4(ks): g(m)
        for ks in range(4):
            for t in range(4):
                need = tok[(ks, t)] if t > 0 else tok[(ks, 0)]
                g.lwait(max(need, tok[(ks, 0)]))
                g(mm(st, ks, t))
                if t == 0 and ks < 3:
                    for r in rd_x(ks + 1, so) + rd_a(ks + 1, 0, so): g(r)
                    tok[(ks + 1, 0)] = g.lmark()
                    for r in rd_a(ks + 1, 1, so): g(r)
                    tok[(ks + 1, 1)] = g.lmark()
                if t == 1 and ks < 3:
                    for tt in (2, 3):
                        for r in rd_a(ks + 1, tt, so): g(r)
                        tok[(ks + 1, tt)] = g.lmark()
                if t >= 2 and pend: g('\n'.join(pend.pop(0)))
        assert not pend
        if st + 2 <= 6: toks.append(g.vmark())
        if st == 4:
            g(f"""
            s_lshr_b32 s{sT0}, s2, 5
            s_lshl_b32 s{sT0}, s{sT0}, 9
            s_add_u32 s{sT0}, s{sT0}, {FU}
            v_lshlrev_b32 v{vFA}, 3, v1
            v_add_u32 v{vFA}, s{sT0}, v{vFA}
            """)
            tok_fu = poll_issue(g, 2)
    for ks in range(4):
        for m in m4(ks): g(m)
    stamp(g, 4)
    return tok_b1, tok_fu

def stats_and_bias(g, tok_b1):
    w = sW
    t0 = vT
    g(f"""
    v_and_b32 v{t0}, 3, v1
    v_cmp_eq_u32 s[{sMK}:{sMK+1}], 1, v{t0}
    v_cmp_eq_u32 s[{sMK+2}:{sMK+3}], 2, v{t0}
    v_cmp_eq_u32 s[{sMK+4}:{sMK+5}], 3, v{t0}
    """)
    for r in range(4): g(f'v_add_f32 v{vS+r}, v{vS+r}, v{vS+4+r}')
    g(f"""
    v_add_f32 v{vS+8}, v{vS+8}, v{vS+12}
    v_add_f32 v{vS+16}, v{vS+16}, v{vS+20}
    v_cndmask_b32 v{vS}, v{vS}, v{vS+1}, s[{sMK}:{sMK+1}]
    v_mov_b32 v{vS+9}, v{vS+8}
    v_cndmask_b32 v{vS}, v{vS}, v{vS+2}, s[{sMK+2}:{sMK+3}]
    v_mov_b32 v{vS+17}, v{vS+16}
    v_cndmask_b32 v{vS}, v{vS}, v{vS+3}, s[{sMK+4}:{sMK+5}]
    v_permlane32_swap_b32 v{vS+8}, v{vS+9}
    v_mov_b32 v{vS+1}, v{vS}
    v_permlane32_swap_b32 v{vS+16}, v{vS+17}
    s_mov_b32 s{sT0}, 0x3b124925
    v_permlane32_swap_b32 v{vS}, v{vS+1}
    v_add_f32 v{vS+8}, v{vS+8}, v{vS+9}
    v_add_f32 v{vS+16}, v{vS+16}, v{vS+17}
    v_add_f32 v{vS}, v{vS}, v{vS+1}
    v_mul_f32 v{vS+8}, s{sT0}, v{vS+8}
    v_mul_f32 v{vS}, s{sT0}, v{vS}
    v_cvt_pk_bf16_f32 v{vS+17}, v{vS+16}, v{vS+16}
    v_fma_f32 v{vS}, -v{vS+8}, v{vS+8}, v{vS}
    v_and_b32 v{vS+18}, 0xffff0000, v{vS+17}
    v_max_f32 v{vS}, 0, v{vS}
    v_sub_f32 v{vS+18}, v{vS+16}, v{vS+18}
    v_cvt_pk_bf16_f32 v{vS+1}, v{vS}, v{vS}
    v_cvt_pk_bf16_f32 v{vC}, v{vS+16}, v{vS+18}
    v_and_b32 v{vS+1}, 0xffff0000, v{vS+1}
    v_and_b32 v{t0}, 31, v1
    v_add_f32 v{vS+1}, 0x3727c5ac, v{vS+1}
    v_lshlrev_b32 v{t0}, 3, v{t0}
    v_cvt_pk_bf16_f32 v{vS+1}, v{vS+1}, v{vS+1}
    s_lshl_b32 s{sT0}, s{w}, 8
    s_add_u32 s{sT0}, s{sT0}, {EX}
    v_and_b32 v{vS+1}, 0xffff0000, v{vS+1}
    v_add_u32 v{t0+1}, s{sT0}, v{t0}
    v_sqrt_f32 v{vS+1}, v{vS+1}
    """)
    g.vwait(tok_b1)
    g(f"""
    v_mov_b32 v{vC+1}, v{vB1}
    v_cvt_pk_bf16_f32 v{vS+9}, v{vS+8}, v{vS+8}
    ds_write_b64 v{t0+1}, v[{vC}:{vC+1}]
    v_cvt_pk_bf16_f32 v{vS+1}, v{vS+1}, v{vS+1}
    v_and_b32 v{vS+10}, 0xffff0000, v{vS+9}
    v_and_b32 v{vS+2}, 0xffff0000, v{vS+1}
    v_xor_b32 v{vS+9}, 0x80008000, v{vS+9}
    v_rcp_f32 v{vS+3}, v{vS+2}
    v_cmp_gt_u32 s[{sMK}:{sMK+1}], 32, v1
    v_and_b32 v{vS+1}, 0xffff, v{vS+1}
    v_mov_b32 v{vX+2}, 0
    v_mov_b32 v{vX+3}, 0
    v_cndmask_b32 v{vX}, 0, v{vS+9}, s[{sMK}:{sMK+1}]
    v_cndmask_b32 v{vX+1}, 0, v{vS+1}, s[{sMK}:{sMK+1}]
    s_lshl_b32 s{sT0}, s{w}, 8
    s_add_u32 s{sT0}, s{sT0}, {ST}
    v_add_u32 v{t0+4}, s{sT0}, v{t0}
    v_mov_b32 v{t0+2}, v{vS+10}
    v_mov_b32 v{t0+3}, v{vS+3}
    ds_write_b64 v{t0+4}, v[{t0+2}:{t0+3}]
    v_mul_f32 v{vRS}, {LOG2E:#x}, v{vS+3}
    """)
    for t in range(4):
        g(f'v_mov_b32 v{vC+4*t+2}, 0')
        g(f'v_mov_b32 v{vC+4*t+3}, 0')
    g('s_waitcnt lgkmcnt(0)\ns_barrier')
    for t in (1, 2, 3):
        g(f"""
        s_add_u32 s{sT0}, s{w}, {t}
        s_and_b32 s{sT0}, s{sT0}, 3
        s_lshl_b32 s{sT0}, s{sT0}, 8
        s_add_u32 s{sT0}, s{sT0}, {EX}
        v_add_u32 v{t0+1}, s{sT0}, v{t0}
        ds_read_b64 v[{vC+4*t}:{vC+4*t+1}], v{t0+1}
        """)

def bias_mfma(g):
    g('s_waitcnt lgkmcnt(0)')
    for t in range(4):
        acc = f'v[{vACC+16*t}:{vACC+16*t+15}]'
        g(f'v_mfma_f32_32x32x16_bf16 {acc}, v[{vC+4*t}:{vC+4*t+3}], v[{vX}:{vX+3}], {acc}')

def w2_setup(g):
    w = sW; t = vT
    g(f"""
    v_lshrrev_b32 v{t}, 3, v1
    s_mul_i32 s{sT0}, s{w}, {28*16}
    v_add_u32 v{t}, s{sT0}, v{t}
    v_mul_u32_u24 v{t}, 896, v{t}
    v_and_b32 v{t+1}, 7, v1
    v_bfe_u32 v{t+2}, v1, 4, 1
    v_lshlrev_b32 v{t+2}, 2, v{t+2}
    v_xor_b32 v{t+1}, v{t+1}, v{t+2}
    v_lshl_add_u32 v{t}, v{t+1}, 4, v{t}
    s_lshl_b32 s{sT0}, s{sNC}, 7
    v_add_u32 v{vWD2}, s{sT0}, v{t}
    s_mul_i32 s{sRB}, s{w}, {NRING*2048}
    s_add_u32 s{sRB}, s{sRB}, {W2R}
    v_bfe_u32 v{t}, v1, 2, 2
    v_lshrrev_b32 v{t+1}, 5, v1
    v_lshl_add_u32 v{t+1}, v{t+1}, 2, v{t}
    v_lshlrev_b32 v{t+1}, 7, v{t+1}
    v_bfe_u32 v{t+2}, v1, 4, 1
    v_lshlrev_b32 v{t+2}, 5, v{t+2}
    v_and_b32 v{t+3}, 3, v1
    v_lshl_add_u32 v{t+2}, v{t+3}, 3, v{t+2}
    v_add3_u32 v{t+1}, v{t+1}, v{t+2}, s{sRB}
    v_lshrrev_b32 v{t}, 1, v{t}
    s_and_b32 s{sT0}, s{w}, 1
    v_xor_b32 v{t}, s{sT0}, v{t}
    v_lshl_add_u32 v{vWR2}, v{t}, 6, v{t+1}
    v_xor_b32 v{t}, 1, v{t}
    v_lshl_add_u32 v{vWR2+1}, v{t}, 6, v{t+1}
    """)

class W2Pipe:
    def __init__(self, g):
        self.g = g; self.nd = 0; self.nr = 0; self.vt = {}; self.lt = {}
    def dma(self):
        g = self.g; ks = self.nd
        if ks >= 28: return
        if ks >= NRING:
            assert ks - NRING < self.nr
            g.lwait(self.lt[ks - NRING])
        sl = ks % NRING
        for q in range(2):
            g(f"""
            s_add_u32 m0, s{sRB}, {sl*2048 + q*1024}
            s_mov_b32 s{sT5}, {(16*ks + 8*q)*896}
            buffer_load_dwordx4 v{vWD2}, {srd(SRD_W2)}, s{sT5} offen{pol('w2')} lds
            """)
        self.vt[ks] = g.vmark(); self.nd += 1
    def read(self):
        g = self.g; ks = self.nr
        if ks >= 28 or ks >= self.nd: return
        g.vwait(self.vt[ks])
        sl = ks % NRING
        for dl in range(2):
            a = 8 * ks + 4 * dl
            g(f'ds_read_b64_tr_b16 {ar(a, 2)}, v{vWR2+dl} offset:{sl*2048}')
            g(f'ds_read_b64_tr_b16 {ar(a+2, 2)}, v{vWR2+dl} offset:{sl*2048+1024}')
        self.lt[ks] = g.lmark(); self.nr += 1
    def step(self):
        self.read()
        if self.nd < 28 and self.nd - NRING < self.nr - 1: self.dma()
    def done(self): return self.nr >= 28

def mish_epilogue(g, w2):
    w = sW
    vAD = vT + 4
    g(f"""
    s_lshl_b32 s{sT0}, s{sMT}, 2
    s_add_u32 s{sT0}, s{sT0}, s{w}
    s_mul_i32 s{sT0}, s{sT0}, 114688
    s_lshl_b32 s{sT1}, s{sNJ}, 13
    s_add_u32 s{sT0}, s{sT0}, s{sT1}
    v_lshlrev_b32 v{vAD}, 4, v1
    v_add_u32 v{vAD}, s{sT0}, v{vAD}
    """)
    vE, vP = vA, vA + 16
    cnt = 0
    def tick():
        nonlocal cnt
        cnt += 1
        if cnt % 3 == 0 and cnt >= 6: w2.step()
    for t in range(4):
        a0 = vACC + 16 * t
        for i in range(16): g(f'v_mul_f32 v{a0+i}, v{vRS}, v{a0+i}')
        tick()
        for i in range(16): g(f'v_exp_f32 v{vE+i}, v{a0+i}')
        tick()
        for i in range(16): g(f'v_add_f32 v{vE+i}, 1.0, v{vE+i}')
        tick()
        for i in range(16): g(f'v_fma_f32 v{vE+i}, v{vE+i}, v{vE+i}, 1.0')
        tick()
        for i in range(16): g(f'v_rcp_f32 v{vE+i}, v{vE+i}')
        tick()
        for i in range(16): g(f'v_fma_f32 v{vE+i}, v{vE+i}, -2.0, 1.0')
        tick()
        for i in range(16): g(f'v_mul_f32 v{vE+i}, v{vE+i}, v{a0+i}')
        tick()
        for i in range(8): g(f'v_cvt_pk_bf16_f32 v{vP+i}, v{vE+2*i}, v{vE+2*i+1}')
        g(f"""
        s_add_u32 s{sT0}, s{w}, {t}
        s_and_b32 s{sT0}, s{sT0}, 3
        s_lshl_b32 s{sT0}, s{sT0}, 11
        """)
        g(f'buffer_store_dwordx4 v[{vP}:{vP+3}], v{vAD}, {srd(SRD_WS)}, s{sT0} offen sc1')
        g(f'buffer_store_dwordx4 v[{vP+4}:{vP+7}], v{vAD}, {srd(SRD_WS)}, s{sT0} offen offset:1024 sc1')
    return g.vmark()

def conv_regs(g):
    w = sW
    g(f"""
    s_lshr_b32 s{sCC}, s{w}, 1
    s_and_b32 s{sPAR}, s{w}, 1
    s_lshl_b32 s{sCH}, s2, 1
    s_add_u32 s{sCH}, s{sCH}, s{sCC}
    s_mul_i32 s{sCB}, s{sCC}, {CH}
    s_add_u32 s{sCB}, s{sCB}, {CVB}
    """)

def conv_load_h(g):
    t = vT; b = vHB
    g(f"""
    s_lshl_b32 s{sT0}, s{sCH}, 12
    s_lshl_b32 s{sT1}, s{sPAR}, 11
    s_add_u32 s{sT0}, s{sT0}, s{sT1}
    v_lshlrev_b32 v{t}, 4, v1
    v_add_u32 v{t}, s{sT0}, v{t}
    v_add_u32 v{t+1}, 4, v{t}
    v_add_u32 v{vUA}, {UR_OFF}, v{t}
    buffer_load_dwordx4 v[{b}:{b+3}], v{t}, {srd(SRD_H)}, 0 offen{pol('h')}
    buffer_load_dwordx4 v[{b+4}:{b+7}], v{t}, {srd(SRD_H)}, 0 offen offset:1024{pol('h')}
    buffer_load_dwordx4 v[{b+8}:{b+11}], v{t+1}, {srd(SRD_H)}, 0 offen{pol('h')}
    buffer_load_dwordx4 v[{b+12}:{b+15}], v{t+1}, {srd(SRD_H)}, 0 offen offset:1024{pol('h')}
    """)
    return g.vmark()

def conv_load_u(g):
    t = vT; b = vHB
    g(f"""
    buffer_load_dwordx4 v[{b+16}:{b+19}], v{vUA}, {srd(SRD_WS)}, 0 offen sc1
    buffer_load_dwordx4 v[{b+20}:{b+23}], v{vUA}, {srd(SRD_WS)}, 0 offen offset:1024 sc1
    """)
    return g.vmark()

def conv_fill(g, tok_h, tok_u):
    t = vT; b = vHB
    g(f"""
    s_lshl_b32 s{sT1}, s{sPAR}, 11
    s_add_u32 s{sT0}, s{sCB}, s{sT1}
    v_lshlrev_b32 v{t}, 4, v1
    v_add_u32 v{t}, s{sT0}, v{t}
    """)
    g.vwait(tok_h)
    for k in range(4):
        g(f'v_alignbit_b32 v{b+8+k}, v{b+8+k}, v{b+k}, 16')
        g(f'v_alignbit_b32 v{b+12+k}, v{b+12+k}, v{b+4+k}, 16')
    g(f"""
    ds_write_b128 v{t}, v[{b}:{b+3}] offset:{cHA+32}
    ds_write_b128 v{t}, v[{b+4}:{b+7}] offset:{cHA+32+1024}
    ds_write_b128 v{t}, v[{b+8}:{b+11}] offset:{cHB+32}
    ds_write_b128 v{t}, v[{b+12}:{b+15}] offset:{cHB+32+1024}
    v_readfirstlane_b32 s{sT2}, v{b}
    v_mov_b32 v{b+24}, 0
    v_mov_b32 v{b+25}, 0
    v_mov_b32 v{b+26}, 0
    v_mov_b32 v{b+27}, 0
    v_lshlrev_b32 v{t+1}, 4, v1
    v_add_u32 v{t+1}, s{sCB}, v{t+1}
    s_lshl_b32 s{sT2}, s{sT2}, 16
    s_cmp_eq_u32 s{sPAR}, 0
    s_cbranch_scc0 L_cv_par1
    s_mov_b64 exec, 3
    """)
    with uncounted(g):
        g(f"""
        ds_write_b128 v{t+1}, v[{b+24}:{b+27}] offset:{cHA}
        v_cmp_eq_u32 vcc, 1, v1
        v_mov_b32 v{b+28}, s{sT2}
        v_cndmask_b32 v{b+27}, 0, v{b+28}, vcc
        ds_write_b128 v{t+1}, v[{b+24}:{b+27}] offset:{cHB}
        s_mov_b64 exec, -1
        s_branch L_cv_join
        L_cv_par1:
        s_mov_b64 exec, 0x3fffffff
        ds_write_b128 v{t+1}, v[{b+24}:{b+27}] offset:{cUR+4096}
        s_mov_b64 exec, -1
        L_cv_join:
        """)
    g.vwait(tok_u)
    g(f"""
    ds_write_b128 v{t}, v[{b+16}:{b+19}] offset:{cUR}
    ds_write_b128 v{t}, v[{b+20}:{b+23}] offset:{cUR+1024}
    """)

def conv_main(g, w2, hooks):
    t = vT
    vAA = t + 2
    vBA = t + 6
    g(f"""
    v_and_b32 v{t}, 15, v1
    v_add_u32 v{t+1}, 1, v{t}
    v_lshrrev_b32 v{t+1}, 1, v{t+1}
    v_lshrrev_b32 v{vBA}, 4, v1
    v_lshl_add_u32 v{t+1}, v{vBA}, 2, v{t+1}
    v_lshlrev_b32 v{t+1}, 2, v{t+1}
    v_and_b32 v{vAA}, 1, v1
    v_cmp_eq_u32 vcc, 0, v{vAA}
    v_mov_b32 v{vAA+1}, {cHB}
    v_cndmask_b32 v{vAA}, 0, v{vAA+1}, vcc
    s_lshl_b32 s{sT1}, s{sPAR}, 6
    s_add_u32 s{sT0}, s{sCB}, s{sT1}
    v_add3_u32 v{vAA}, v{vAA}, v{t+1}, s{sT0}
    v_add_u32 v{vAA+1}, 1024, v{vAA}
    v_add_u32 v{vAA+2}, 2048, v{vAA}
    v_add_u32 v{vAA+3}, 3072, v{vAA}
    v_lshlrev_b32 v{vBA}, 4, v{vBA}
    v_lshlrev_b32 v{t}, 5, v{t}
    v_sub_u32 v{vBA}, v{vBA}, v{t}
    s_add_u32 s{sT0}, s{sT0}, {cUR + 480}
    v_add_u32 v{vBA}, s{sT0}, v{vBA}
    s_waitcnt lgkmcnt(0)
    s_barrier
    """)
    def rdA(m):
        d = vAR + 4 * (m & 3); a = vAA + (m >> 3); o = 32 * (m & 7)
        return [f'ds_read2_b32 v[{d}:{d+1}], v{a} offset0:{o} offset1:{o+1}',
                f'ds_read2_b32 v[{d+2}:{d+3}], v{a} offset0:{o+2} offset1:{o+3}']
    def rdB(phi):
        d = vB + 4 * phi
        return f'ds_read_b128 v[{d}:{d+3}], v{vBA} offset:{128*phi}'
    tokA = {}; tokB = {}
    def issueA(m):
        for r in rdA(m): g(r)
        tokA[m] = g.lmark()
    issueA(0)
    for j in range(7, -1, -1):
        g(rdB(28 - 4 * j)); tokB[28 - 4 * j] = g.lmark()
    issueA(1)
    nm = 0
    for m in range(32):
        js = list(range(7, (m >> 2) - 1, -1))
        pre = []
        if m + 1 <= 3: pre = [('B', m + 1 + 28 - 4 * j) for j in range(7, -1, -1)]
        if m + 2 < 32: pre = [('A', m + 2)] + pre if m + 1 > 3 else pre[:2] + [('A', m + 2)] + pre[2:]
        waited = -1
        for idx, j in enumerate(js):
            phi = m - 4 * j + 28
            need = max(tokA[m], tokB[phi])
            if need > waited:
                g.lwait(need); waited = need
            d = vAR + 4 * (m & 3)
            acc = ar(aCV + 4 * j, 4)
            c = '0' if m == 0 else acc
            g(f'v_mfma_f32_16x16x32_bf16 {acc}, v[{d}:{d+3}], v[{vB+4*phi}:{vB+4*phi+3}], {c}')
            nm += 1
            n = -(-len(pre) // (len(js) - idx)) if pre else 0
            for _ in range(n):
                kind, x = pre.pop(0)
                if kind == 'A': issueA(x)
                else:
                    g(rdB(x)); tokB[x] = g.lmark()
            if nm >= 32 and nm % 7 == 0: w2.step()
            if nm in hooks: hooks[nm](g)

def conv_epilogue(g):
    w = sW; t = vT
    g(f"""
    s_lshl_b32 s{sT0}, s{w}, 12
    s_add_u32 s{sT0}, s{sT0}, {C_RED}
    v_lshlrev_b32 v{t}, 4, v1
    v_add_u32 v{t+1}, s{sT0}, v{t}
    s_xor_b32 s{sT1}, s{w}, 1
    s_lshl_b32 s{sT1}, s{sT1}, 12
    s_add_u32 s{sT1}, s{sT1}, {C_RED}
    v_add_u32 v{t+2}, s{sT1}, v{t}
    v_and_b32 v{t+3}, 15, v1
    v_lshlrev_b32 v{t+3}, 5, v{t+3}
    v_lshrrev_b32 v{t+4}, 4, v1
    v_lshl_add_u32 v{t+3}, v{t+4}, 3, v{t+3}
    s_lshl_b32 s{sT0}, s{sPAR}, 11
    s_sub_u32 s{sT0}, s{sCB}, s{sT0}
    s_add_u32 s{sT0}, s{sT0}, {cUR + 4088 - 1536}
    v_sub_u32 v{t+4}, s{sT0}, v{t+3}
    """)
    for jj in range(4):
        g(f'ds_read_b64 v[{vB+32+2*jj}:{vB+33+2*jj}], v{t+4} offset:{512*(3-jj)}')
    g(f's_cmp_eq_u32 s{sPAR}, 0\ns_cbranch_scc0 L_cv_e1')
    with uncounted(g):
        for jj in range(4): g(f'ds_write_b128 v{t+1}, {ar(aCV+16+4*jj, 4)} offset:{1024*jj}')
        for r in range(16): g(f'v_accvgpr_read_b32 v{vB+r}, a{aCV+r}')
        g('s_branch L_cv_e2\nL_cv_e1:')
        for jj in range(4): g(f'ds_write_b128 v{t+1}, {ar(aCV+4*jj, 4)} offset:{1024*jj}')
        for r in range(16): g(f'v_accvgpr_read_b32 v{vB+r}, a{aCV+16+r}')
        g('L_cv_e2:')
    g('s_waitcnt lgkmcnt(0)\ns_barrier')
    for jj in range(4):
        g(f'ds_read_b128 v[{vB+16+4*jj}:{vB+19+4*jj}], v{t+2} offset:{1024*jj}')
    for jj in range(4):
        u0, u1 = vB + 32 + 2 * jj, vB + 33 + 2 * jj
        o = vB + 40 + 4 * jj
        g(f"""
        v_and_b32 v{o}, 0xffff0000, v{u1}
        v_lshlrev_b32 v{o+1}, 16, v{u1}
        v_and_b32 v{o+2}, 0xffff0000, v{u0}
        v_lshlrev_b32 v{o+3}, 16, v{u0}
        """)
    for r in range(16): g(f'v_fmac_f32 v{vB+r}, s{sDV}, v{vB+40+r}')
    g('s_waitcnt lgkmcnt(0)')
    for r in range(16): g(f'v_add_f32 v{vB+r}, v{vB+r}, v{vB+16+r}')
    for jj in range(4):
        g(f'v_cvt_pk_bf16_f32 v{vB+32+2*jj}, v{vB+4*jj}, v{vB+4*jj+1}')
        g(f'v_cvt_pk_bf16_f32 v{vB+33+2*jj}, v{vB+4*jj+2}, v{vB+4*jj+3}')
    g(f"""
    s_lshl_b32 s{sT0}, s{w}, 11
    s_add_u32 s{sT0}, s{sT0}, {C_ZS}
    v_add_u32 v{t+3}, s{sT0}, v{t+3}
    v_add_u32 v{t}, s{sT0}, v{t}
    """)
    for jj in range(4):
        g(f'ds_write_b64 v{t+3}, v[{vB+32+2*jj}:{vB+33+2*jj}] offset:{512*jj}')
    g(f"""
    s_lshl_b32 s{sT0}, s{sCH}, 12
    s_lshl_b32 s{sT1}, s{sPAR}, 11
    s_add_u32 s{sT0}, s{sT0}, s{sT1}
    s_add_u32 s{sT0}, s{sT0}, {Z_OFF}
    v_lshlrev_b32 v{t+1}, 4, v1
    v_add_u32 v{t+1}, s{sT0}, v{t+1}
    s_waitcnt lgkmcnt(0)
    ds_read_b128 v[{vB}:{vB+3}], v{t}
    ds_read_b128 v[{vB+4}:{vB+7}], v{t} offset:1024
    s_waitcnt lgkmcnt(1)
    buffer_store_dwordx4 v[{vB}:{vB+3}], v{t+1}, {srd(SRD_WS)}, 0 offen sc1
    s_waitcnt lgkmcnt(0)
    buffer_store_dwordx4 v[{vB+4}:{vB+7}], v{t+1}, {srd(SRD_WS)}, 0 offen offset:1024 sc1
    """)
    return g.vmark()

def act_addr(g):
    w = sW; t = vT
    g(f"""
    s_lshr_b32 s{sT0}, s{w}, 1
    s_lshl_b32 s{sT1}, s{sM2}, 1
    s_add_u32 s{sT2}, s{sT1}, s{sT0}
    s_xor_b32 s{sT0}, s{sT0}, 1
    s_add_u32 s{sT1}, s{sT1}, s{sT0}
    s_mul_i32 s{sT2}, s{sT2}, 114688
    s_mul_i32 s{sT1}, s{sT1}, 114688
    s_mul_i32 s{sT0}, s{w}, {28*1024}
    s_add_u32 s{sT2}, s{sT2}, s{sT0}
    s_add_u32 s{sT1}, s{sT1}, s{sT0}
    v_lshlrev_b32 v{t+8}, 4, v1
    v_add_u32 v{vAA2}, s{sT2}, v{t+8}
    v_add_u32 v{vAA2+1}, s{sT1}, v{t+8}
    """)

def act_load(g, ks, tk):
    for beta in range(2):
        slot = (2 * ks + beta) % 32
        d = vACT + 4 * slot
        g(f"""
        s_mov_b32 s{sT4}, {(ks >> 2) * 4096}
        buffer_load_dwordx4 v[{d}:{d+3}], v{vAA2+beta}, {srd(SRD_WS)}, s{sT4} offen offset:{(ks & 3)*1024} sc1
        """)
    tk[ks] = g.vmark()

def x_tile_load(g):
    w = sW; t = vT + 8
    g(f"""
    v_lshrrev_b32 v{t}, 3, v1
    s_lshl_b32 s{sT0}, s{sM2}, 6
    s_lshl_b32 s{sT1}, s{w}, 4
    s_add_u32 s{sT0}, s{sT0}, s{sT1}
    v_add_u32 v{t}, s{sT0}, v{t}
    v_mul_u32_u24 v{t}, 896, v{t}
    s_lshl_b32 s{sT0}, s{sNC}, 7
    v_add_u32 v{t}, s{sT0}, v{t}
    v_and_b32 v{t+1}, 7, v1
    v_lshrrev_b32 v{t+2}, 4, v1
    v_xor_b32 v{t+1}, v{t+1}, v{t+2}
    v_lshl_add_u32 v{vOA}, v{t+1}, 4, v{t}
    v_xor_b32 v{t+1}, 4, v{t+1}
    v_lshl_add_u32 v{vOA+1}, v{t+1}, 4, v{t}
    v_add_u32 v{vOA+1}, {8*896}, v{vOA+1}
    s_lshl_b32 s{sT2}, s{w}, 11
    s_add_u32 m0, s{sT2}, {XT}
    s_nop 0
    buffer_load_dwordx4 v{vOA}, {srd(SRD_Q)}, 0 offen lds
    s_add_u32 m0, s{sT2}, {XT+1024}
    s_nop 0
    buffer_load_dwordx4 v{vOA+1}, {srd(SRD_Q)}, 0 offen lds
    """)

vZL = 56
def z_load(g):
    w = sW; t = vT + 8
    g(f"""
    v_lshrrev_b32 v{t}, 3, v1
    s_lshl_b32 s{sT0}, s{sNC}, 6
    s_lshl_b32 s{sT1}, s{w}, 4
    s_add_u32 s{sT0}, s{sT0}, s{sT1}
    v_add_u32 v{t}, s{sT0}, v{t}
    v_lshlrev_b32 v{t}, 12, v{t}
    v_and_b32 v{t+1}, 7, v1
    v_lshl_add_u32 v{t}, v{t+1}, 4, v{t}
    s_lshl_b32 s{sT0}, s{sM2}, 7
    s_add_u32 s{sT0}, s{sT0}, {Z_OFF}
    v_add_u32 v{t}, s{sT0}, v{t}
    v_add_u32 v{t+1}, {8*4096}, v{t}
    buffer_load_dwordx4 v[{vZL}:{vZL+3}], v{t}, {srd(SRD_WS)}, 0 offen sc1
    buffer_load_dwordx4 v[{vZL+4}:{vZL+7}], v{t+1}, {srd(SRD_WS)}, 0 offen sc1
    """)
    return g.vmark()

def gemm2_main(g, w2, tk, hooks, DIST):
    nxt = max(tk) + 1
    for ks in range(28):
        while w2.nr <= ks: w2.step()
        g.lwait(w2.lt[ks])
        g.vwait(tk[ks])
        for dl in range(2):
            for beta in range(2):
                acc = vr(vACC + 16 * (dl + 2 * beta), 16)
                slot = (2 * ks + beta) % 32
                c = '0' if ks == 0 else acc
                g(f'v_mfma_f32_32x32x16_bf16 {acc}, {ar(8*ks + 4*dl, 4)}, v[{vACT+4*slot}:{vACT+4*slot+3}], {c}')
        w2.step()
        while nxt < 28 and nxt <= ks + DIST:
            act_load(g, nxt, tk); nxt += 1
        if ks in hooks: hooks[ks](g)

def gemm2_final(g, tok_z):
    w = sW; t = vT
    g.vwait(tok_z)
    g(f"""
    v_lshlrev_b32 v{t}, 4, v1
    s_lshl_b32 s{sT0}, s{w}, 11
    s_add_u32 s{sT0}, s{sT0}, {ZT}
    v_add_u32 v{t+1}, s{sT0}, v{t}
    ds_write_b128 v{t+1}, v[{vZL}:{vZL+3}]
    ds_write_b128 v{t+1}, v[{vZL+4}:{vZL+7}] offset:1024
    s_barrier
    """)
    for sig in range(3):
        x = sig + 1
        g(f"""
        s_xor_b32 s{sT0}, s{w}, {x}
        s_mul_i32 s{sT0}, s{sT0}, 12288
        s_add_u32 s{sT0}, s{sT0}, {G2_RED + sig*4096}
        v_add_u32 v{t+1+sig}, s{sT0}, v{t}
        """)
        for qd in range(4):
            a = vACC + 16 * x + 4 * qd
            g(f'ds_write_b128 v{t+1+sig}, v[{a}:{a+3}] offset:{1024*qd}')
    g(f"""
    s_lshr_b32 s{sT2}, s{w}, 1
    s_and_b32 s{sT3}, s{w}, 1
    v_and_b32 v{t+4}, 31, v1
    s_lshl_b32 s{sT0}, s{sT2}, 5
    v_add_u32 v{t+5}, s{sT0}, v{t+4}
    v_lshlrev_b32 v{t+6}, 7, v{t+5}
    v_lshrrev_b32 v{t+7}, 5, v1
    v_lshl_add_u32 v{t+6}, v{t+7}, 3, v{t+6}
    v_add_u32 v{t+6}, {XT}, v{t+6}
    v_bfe_u32 v{t+8}, v1, 1, 3
    s_lshl_b32 s{sT0}, s{sT3}, 2
    v_xor_b32 v{t+8}, s{sT0}, v{t+8}
    """)
    for jj in range(4):
        g(f"""
        v_xor_b32 v{t+9}, {jj}, v{t+8}
        v_lshl_add_u32 v{vXA+jj}, v{t+9}, 4, v{t+6}
        """)
    g(f"""
    v_bfe_u32 v{t+8}, v1, 2, 2
    v_lshl_add_u32 v{t+8}, v{t+7}, 2, v{t+8}
    s_lshl_b32 s{sT0}, s{sT3}, 5
    v_add_u32 v{t+8}, s{sT0}, v{t+8}
    v_lshlrev_b32 v{t+8}, 7, v{t+8}
    v_bfe_u32 v{t+9}, v1, 4, 1
    v_lshlrev_b32 v{t+9}, 5, v{t+9}
    v_and_b32 v{t+10}, 3, v1
    v_lshl_add_u32 v{t+9}, v{t+10}, 3, v{t+9}
    s_lshl_b32 s{sT0}, s{sT2}, 6
    s_add_u32 s{sT0}, s{sT0}, {ZT}
    v_add3_u32 v{vZA}, v{t+8}, v{t+9}, s{sT0}
    s_and_b32 s{sT0}, s{sM2}, 1
    s_lshl_b32 s{sT0}, s{sT0}, 9
    s_add_u32 s{sT0}, s{sT0}, {ST}
    v_lshlrev_b32 v{t+5}, 3, v{t+5}
    v_add_u32 v{t+5}, s{sT0}, v{t+5}
    ds_read_b64 v[{vST}:{vST+1}], v{t+5}
    s_waitcnt lgkmcnt(0)
    s_barrier
    s_mul_i32 s{sT0}, s{w}, 12288
    s_add_u32 s{sT0}, s{sT0}, {G2_RED}
    v_add_u32 v{t+1}, s{sT0}, v{t}
    """)
    R = vACT
    for sig in range(3):
        for qd in range(4):
            a = R + 16 * sig + 4 * qd
            g(f'ds_read_b128 v[{a}:{a+3}], v{t+1} offset:{sig*4096 + qd*1024}')
    XR, ZR = vACT + 48, vACT + 56
    for jj in range(4): g(f'ds_read_b64 v[{XR+2*jj}:{XR+2*jj+1}], v{vXA+jj}')
    A = vACC
    g('s_waitcnt lgkmcnt(12)')
    for r in range(16): g(f'v_add_f32 v{A+r}, v{A+r}, v{R+r}')
    for jj in range(4): g(f'ds_read_b64_tr_b16 v[{ZR+2*jj}:{ZR+2*jj+1}], v{vZA} offset:{jj*1024}')
    g('s_waitcnt lgkmcnt(12)')
    for r in range(16): g(f'v_add_f32 v{A+r}, v{A+r}, v{R+16+r}')
    g('s_waitcnt lgkmcnt(8)')
    for r in range(16): g(f'v_add_f32 v{A+r}, v{A+r}, v{R+32+r}')
    g('s_waitcnt lgkmcnt(0)')
    XF, ZF = vACT, vACT + 16
    for jj in range(4):
        for p in range(2):
            g(f'v_lshlrev_b32 v{XF+4*jj+2*p}, 16, v{XR+2*jj+p}')
            g(f'v_and_b32 v{XF+4*jj+2*p+1}, 0xffff0000, v{XR+2*jj+p}')
            g(f'v_lshlrev_b32 v{ZF+4*jj+2*p}, 16, v{ZR+2*jj+p}')
            g(f'v_and_b32 v{ZF+4*jj+2*p+1}, 0xffff0000, v{ZR+2*jj+p}')
    g(f's_mov_b32 s{sT0}, {LN2:#x}')
    for r in range(16): g(f'v_fma_f32 v{A+r}, v{A+r}, s{sT0}, v{XF+r}')
    for r in range(16): g(f'v_sub_f32 v{XF+r}, v{XF+r}, v{vST}')
    for r in range(16): g(f'v_mul_f32 v{ZF+r}, v{ZF+r}, v{vST+1}')
    for r in range(16): g(f'v_fmac_f32 v{A+r}, v{XF+r}, v{ZF+r}')
    for jj in range(4):
        g(f'v_cvt_pk_bf16_f32 v{XR+2*jj}, v{A+4*jj}, v{A+4*jj+1}')
        g(f'v_cvt_pk_bf16_f32 v{XR+2*jj+1}, v{A+4*jj+2}, v{A+4*jj+3}')
    for jj in range(4): g(f'ds_write_b64 v{vXA+jj}, v[{XR+2*jj}:{XR+2*jj+1}]')
    g(f"""
    s_lshl_b32 s{sT0}, s{w}, 11
    s_add_u32 s{sT0}, s{sT0}, {XT}
    v_add_u32 v{t}, s{sT0}, v{t}
    s_waitcnt lgkmcnt(0)
    s_barrier
    ds_read_b128 v[{R}:{R+3}], v{t}
    ds_read_b128 v[{R+4}:{R+7}], v{t} offset:1024
    s_waitcnt lgkmcnt(1)
    buffer_store_dwordx4 v[{R}:{R+3}], v{vOA}, {srd(SRD_OUT)}, 0 offen
    s_waitcnt lgkmcnt(0)
    buffer_store_dwordx4 v[{R+4}:{R+7}], v{vOA+1}, {srd(SRD_OUT)}, 0 offen
    """)

def epoch_bump(g):
    t = vT + 8
    g(f"""
    s_or_b32 s{sT0}, s2, s{sW}
    s_cmp_lg_u32 s{sT0}, 0
    s_cbranch_scc1 L_nobump
    s_mov_b32 s{sCNT}, 0
    v_lshlrev_b32 v{t}, 4, v1
    v_add_u32 v{t}, {FU}, v{t}
    v_lshlrev_b32 v{t+1}, 3, v1
    v_add_u32 v{t+1}, {FU + 3072}, v{t+1}
    L_bump_poll:
    """)
    R = vACT + 32
    with uncounted(g):
        g(f"""
        buffer_load_dwordx4 v[{R}:{R+3}], v{t}, {srd(SRD_WS)}, 0 offen sc1
        buffer_load_dwordx4 v[{R+4}:{R+7}], v{t}, {srd(SRD_WS)}, 0 offen offset:1024 sc1
        buffer_load_dwordx4 v[{R+8}:{R+11}], v{t}, {srd(SRD_WS)}, 0 offen offset:2048 sc1
        buffer_load_dwordx2 v[{R+12}:{R+13}], v{t+1}, {srd(SRD_WS)}, 0 offen sc1
        s_waitcnt vmcnt(0)
        v_mov_b32 v{R+14}, 0
        """)
        for r in range(14):
            g(f'v_xor_b32 v{R+r}, s{sTAG}, v{R+r}')
            g(f'v_or_b32 v{R+14}, v{R+14}, v{R+r}')
        g(f"""
        v_cmp_ne_u32 vcc, 0, v{R+14}
        s_nop 4
        s_cbranch_vccz L_bump_go
        s_add_u32 s{sCNT}, s{sCNT}, 1
        s_cmp_gt_u32 s{sCNT}, {SPIN_LIMIT}
        s_cbranch_scc1 L_nobump
        s_sleep 4
        s_branch L_bump_poll
        L_bump_go:
        v_mov_b32 v{t}, {EPOCH}
        v_mov_b32 v{t+1}, s{sTAG}
        s_mov_b64 exec, 1
        buffer_store_dword v{t+1}, v{t}, {srd(SRD_WS)}, 0 offen sc1
        s_mov_b64 exec, -1
        L_nobump:
        """)

def body(g):
    w = sW
    prologue(g)
    tok_b1, tok_fu = phase1(g)
    conv_regs(g)
    tok_h = conv_load_h(g)
    stats_and_bias(g, tok_b1)
    w2_setup_done = False
    poll_check(g, tok_fu, 2, 'fu')
    tok_u = conv_load_u(g)
    w2_setup(g)
    w2 = W2Pipe(g)
    bias_mfma(g)
    for _ in range(4): w2.dma()
    x_tile_load(g)
    for _ in range(2): w2.dma()
    stamp(g, 5)
    tok_act = mish_epilogue(g, w2)
    stamp(g, 6)
    conv_fill(g, tok_h, tok_u)
    act_addr(g)
    st = {}
    def hook_fa_flag(g):
        g.vwait(tok_act)
        flag_store(g, f"""
        s_lshl_b32 s{sT0}, s{sMT}, 8
        s_lshl_b32 s{sT1}, s{sNJ}, 4
        s_add_u32 s{sT0}, s{sT0}, s{sT1}
        s_lshl_b32 s{sT1}, s{w}, 2
        s_add_u32 s{sT0}, s{sT0}, s{sT1}
        s_add_u32 s{sT0}, s{sT0}, {FA}
        """, 'fa')
    def hook_fa_poll(g):
        g(f"""
        s_lshl_b32 s{sT0}, s{sMT}, 8
        s_add_u32 s{sT0}, s{sT0}, {FA}
        v_min_u32 v{vFA}, 55, v1
        v_lshlrev_b32 v{vFA}, 2, v{vFA}
        v_add_u32 v{vFA}, s{sT0}, v{vFA}
        """)
        st['fa'] = poll_issue(g, 1)
    conv_main(g, w2, {40: hook_fa_flag, 120: hook_fa_poll})
    stamp(g, 7)
    poll_check(g, st['fa'], 1, 'fa')
    tk = {}
    for ks in range(6): act_load(g, ks, tk)
    tok_z = conv_epilogue(g)
    stamp(g, 8)
    def hook_fz_flag(g):
        g.vwait(tok_z)
        flag_store(g, f"""
        s_lshr_b32 s{sT0}, s2, 5
        s_lshl_b32 s{sT0}, s{sT0}, 9
        s_and_b32 s{sT1}, s2, 31
        s_lshl_b32 s{sT1}, s{sT1}, 4
        s_add_u32 s{sT0}, s{sT0}, s{sT1}
        s_lshl_b32 s{sT1}, s{w}, 2
        s_add_u32 s{sT0}, s{sT0}, s{sT1}
        s_add_u32 s{sT0}, s{sT0}, {FZ}
        """, 'fz')
    def hook_fz_poll(g):
        g(f"""
        s_lshl_b32 s{sT0}, s{sNC}, 9
        s_add_u32 s{sT0}, s{sT0}, {FZ}
        v_lshlrev_b32 v{vFA}, 3, v1
        v_add_u32 v{vFA}, s{sT0}, v{vFA}
        """)
        st['fz'] = poll_issue(g, 2)
    def hook_fz_check(g):
        poll_check(g, st['fz'], 2, 'fz')
        st['z'] = z_load(g)
    gemm2_main(g, w2, tk, {3: hook_fz_flag, 14: hook_fz_poll, 21: hook_fz_check}, 8)
    stamp(g, 9)
    gemm2_final(g, st['z'])
    epoch_bump(g)
    stamp_flush(g)
    g('L_end:\ns_endpgm')

def kernel_text(label=NAME + '_kernel'):
    g = Gen()
    body(g)
    text, n = g.text()
    return f"""
.text
.globl {label}
.p2align 8
.type {label},@function
{label}:
{text}
.section .rodata,"a"
.p2align 6
.amdhsa_kernel {label}
  .amdhsa_next_free_vgpr 512
  .amdhsa_next_free_sgpr 100
  .amdhsa_accum_offset 256
  .amdhsa_group_segment_fixed_size 0
  .amdhsa_kernarg_size 104
  .amdhsa_user_sgpr_count 2
  .amdhsa_user_sgpr_kernarg_segment_ptr 1
  .amdhsa_system_sgpr_workgroup_id_x 1
.end_amdhsa_kernel
"""

if __name__ == '__main__':
    print(kernel_text())
```

```python
import sys, gen2, mkfile
def write(path):
    mkfile.write(path, [(None, 224, 256, gen2.LDS_TOTAL)], gen2.kernel_text())
if __name__ == '__main__':
    write(sys.argv[1] if len(sys.argv) > 1 else 'parallel_sum__ssm_conv_h3__dense_activation_mish__prompt.s')
```

```python
import re

REG_RE = re.compile(r'^(-?|abs\()?([vas])(\d+)\)?$')
RNG_RE = re.compile(r'^-?([vas])\[(\d+):(\d+)\]$')

def regs_of(op):
    op = op.strip()
    if op.startswith('-'): op = op[1:]
    if op.startswith('abs(') and op.endswith(')'): op = op[4:-1]
    if op.startswith('|') and op.endswith('|'): op = op[1:-1]
    m = re.match(r'^([vas])(\d+)$', op)
    if m: return [(m.group(1), int(m.group(2)))]
    m = re.match(r'^([vas])\[(\d+):(\d+)\]$', op)
    if m: return [(m.group(1), i) for i in range(int(m.group(2)), int(m.group(3)) + 1)]
    if op == 'vcc': return [('s', 'vcc')]
    if op in ('exec', 'exec_lo', 'exec_hi'): return [('s', 'exec')]
    if op == 'm0': return [('s', 'm0')]
    return []

TRANS = ('v_exp_f32', 'v_log_f32', 'v_rcp_f32', 'v_rsq_f32', 'v_sqrt_f32', 'v_sin_f32', 'v_cos_f32')
def mfma_passes(opc):
    if '32x32x16' in opc: return 8
    if '16x16x32' in opc: return 4
    if '4x4x4' in opc: return 2
    raise ValueError(opc)
XDL_RAW = {2: 5, 4: 8, 8: 12, 16: 20}
XDL_C_OVL = {2: 4, 4: 6, 8: 10, 16: 18}
XDL_C_SAME = {2: 2, 4: 0, 8: 0, 16: 0}
XDL_WAR_C = {2: 1, 4: 3, 8: 7, 16: 15}

class Ins:
    __slots__ = ('text', 'opc', 'ops', 'rd', 'wr', 'kind', 'mods')
    def __init__(self, text):
        self.text = text
        t = text.split(';')[0].strip()
        self.rd, self.wr, self.kind, self.opc, self.ops = [], [], 'other', '', []
        if not t or t.endswith(':') or t.startswith('.'):
            self.kind = 'label' if t.endswith(':') else 'dir'
            return
        parts = t.split(None, 1)
        opc = parts[0]; self.opc = opc
        rest = parts[1] if len(parts) > 1 else ''
        ops = [o.strip() for o in re.split(r',(?![^\[]*\])', rest)] if rest else []
        mods = ''
        if ops:
            sp = ops[-1].split(None, 1)
            ops[-1] = sp[0]
            mods = sp[1] if len(sp) > 1 else ''
        self.mods = mods
        self.ops = ops
        R = lambda i: regs_of(ops[i]) if i < len(ops) else []
        allr = lambda a: [r for i in range(a, len(ops)) for r in regs_of(ops[i])]
        if opc.startswith('v_mfma'):
            self.kind = 'mfma'; self.wr = R(0); self.rd = allr(1)
        elif opc.startswith('v_cmp'):
            self.kind = 'valu'; self.wr = R(0); self.rd = allr(1)
            if opc.startswith('v_cmpx'): self.wr = self.wr + [('s', 'exec')]
        elif opc.startswith('v_readfirstlane') or opc.startswith('v_readlane'):
            self.kind = 'readlane'; self.wr = R(0); self.rd = allr(1)
        elif opc.startswith('v_permlane'):
            self.kind = 'permlane'; self.wr = R(0) + R(1); self.rd = R(0) + R(1)
        elif opc.startswith('v_'):
            self.kind = 'trans' if opc in TRANS or opc.replace('_e64', '').replace('_e32', '') in TRANS else 'valu'
            self.wr = R(0); self.rd = allr(1)
            if opc.startswith(('v_fmac', 'v_dot2c', 'v_writelane')): self.rd = self.rd + R(0)
            if '_co_' in opc: self.wr = R(0) + R(1); self.rd = allr(2)
            if 'dpp' in opc or 'row_' in mods or 'quad_perm' in mods: self.kind = 'dpp'; self.rd = self.rd + R(0)
        elif opc.startswith('ds_read') :
            self.kind = 'dsr'; self.wr = R(0); self.rd = allr(1)
        elif opc.startswith('ds_write') or opc.startswith('ds_add'):
            self.kind = 'dsw'; self.rd = allr(0)
        elif opc.startswith(('buffer_load', 'global_load')):
            if 'lds' in mods.split() or '_lds_' in opc:
                self.kind = 'dma'; self.rd = allr(0) + [('s', 'm0')]
            else:
                self.kind = 'vld'; self.wr = R(0); self.rd = allr(1)
        elif opc.startswith(('buffer_store', 'global_store')):
            self.kind = 'vst'; self.rd = allr(0)
        elif opc.startswith(('buffer_atomic', 'global_atomic')):
            self.kind = 'vst'; self.rd = allr(0)
            if 'sc0' in mods.split(): self.wr = R(0)
        elif opc.startswith(('buffer_wbl2', 'buffer_inv')):
            self.kind = 'vst'
        elif opc == 's_nop':
            self.kind = 'nop'
        elif opc.startswith('s_load') or opc.startswith('s_memtime') or opc.startswith('s_memrealtime'):
            self.kind = 'smem'; self.wr = R(0); self.rd = allr(1)
        elif opc.startswith(('s_cbranch', 's_branch', 's_endpgm')):
            self.kind = 'branch'
        elif opc.startswith(('s_cmp', 's_bitcmp')):
            self.kind = 'salu'; self.rd = allr(0)
        elif opc.startswith(('s_waitcnt', 's_barrier', 's_sleep', 's_setprio')):
            self.kind = 'sctl'
        elif opc.startswith('s_'):
            self.kind = 'salu'; self.wr = R(0); self.rd = allr(1)
            if 'saveexec' in opc: self.wr = self.wr + [('s', 'exec')]
        else:
            raise ValueError('unknown instr ' + text)
    def ws(self):
        if self.kind in ('label', 'dir'): return 0
        if self.kind == 'nop': return int(self.ops[0], 0) + 1
        return 1
    def is_valu(self):
        return self.kind in ('valu', 'trans', 'dpp', 'permlane', 'readlane')
    def is_vmem(self):
        return self.kind in ('vld', 'vst', 'dma')

def fix_hazards(lines, insert=True):
    out = []
    pos = 0
    lastw = {}
    lastc = {}
    laststore = {}
    ninserted = 0
    for text in lines:
        I = Ins(text)
        if I.kind in ('label', 'dir'):
            out.append(text); continue
        need = 0
        def req(prodpos, n):
            nonlocal need
            need = max(need, n - (pos - prodpos))
        for idx, r in enumerate(I.rd):
            if r in lastw:
                p, k, passes, tag = lastw[r]
                if k == 'mfma':
                    if I.kind == 'mfma':
                        cregs = regs_of(I.ops[3])
                        if r in cregs and r not in regs_of(I.ops[1]) + regs_of(I.ops[2]):
                            same = tag == (I.ops[3], mfma_passes(I.opc))
                            req(p, XDL_C_SAME[passes] if same else XDL_C_OVL[passes])
                        else:
                            req(p, XDL_RAW[passes])
                    elif I.is_valu() or I.is_vmem() or I.kind in ('dsw', 'dsr'):
                        req(p, XDL_RAW[passes])
                elif k in ('valu', 'trans', 'dpp', 'permlane', 'readlane'):
                    if r[0] in 'va':
                        if I.kind == 'mfma': req(p, 2)
                        if I.kind == 'permlane': req(p, 2)
                        if I.kind == 'dpp': req(p, 2)
                        if I.kind == 'readlane': req(p, 1)
                        if k == 'trans' and I.is_valu() and I.kind != 'trans': req(p, 1)
                        if k == 'trans' and I.kind == 'trans': req(p, 1)
                    else:
                        if I.is_vmem(): req(p, 5)
                        elif I.kind == 'readlane': req(p, 4)
                        elif I.is_valu(): req(p, 2)
                        elif I.kind in ('salu',): req(p, 4)
                        if r == ('s', 'exec') and I.kind == 'mfma': req(p, 4)
                elif k == 'salu' and r == ('s', 'm0') and I.kind == 'dma':
                    req(p, 1)
        for r in I.wr:
            if r in lastw:
                p, k, passes, tag = lastw[r]
                if k == 'mfma':
                    if I.kind == 'mfma':
                        cregs = regs_of(I.ops[3])
                        if r not in cregs: req(p, XDL_C_OVL[passes])
                    else:
                        req(p, XDL_RAW[passes])
            if r in lastc and (I.is_valu()):
                p, passes = lastc[r]; req(p, XDL_WAR_C[passes])
            if r in laststore and I.is_valu():
                req(laststore[r], 2)
            if r in laststore and I.kind in ('vld', 'dsr'):
                req(laststore[r], 1)
        if I.kind == 'mfma' and ('s', 'exec') in lastw and lastw[('s', 'exec')][1] != 'salu':
            req(lastw[('s', 'exec')][0], 4)
        if I.kind == 'dpp' and ('s', 'exec') in lastw and lastw[('s', 'exec')][1] != 'salu':
            req(lastw[('s', 'exec')][0], 5)
        if need > 0:
            if not insert:
                raise RuntimeError('hazard at: ' + text + ' need %d' % need)
            n = need
            while n > 0:
                k = min(n, 16)
                out.append('  s_nop %d' % (k - 1)); pos += k; n -= k
            ninserted += 1
        out.append(text)
        pos += I.ws()
        if I.kind == 'mfma':
            ps = mfma_passes(I.opc)
            for r in I.wr: lastw[r] = (pos, 'mfma', ps, (I.ops[0], ps))
            for r in regs_of(I.ops[3]): lastc[r] = (pos, ps)
        else:
            for r in I.wr:
                lastw[r] = (pos, I.kind, 0, None)
        if I.kind == 'vst' and ('x4' in I.opc or 'x3' in I.opc):
            for r in regs_of(I.ops[0]) + (regs_of(I.ops[1]) if I.opc.startswith('global') else []):
                laststore[r] = pos
        if I.kind == 'dsw' and 'b128' in I.opc:
            pass
    return out, ninserted

def check_loop(body):
    fixed, _ = fix_hazards(body)
    two = fixed + fixed
    fix_hazards(two, insert=False)

class Gen:
    def __init__(self):
        self.lines = []
        self.vm = 0
        self.lg = 0
        self.vm_done = 0
        self.lg_done = 0
        self.track = True
    def __call__(self, s):
        for l in s.strip('\n').split('\n'):
            l = l.rstrip()
            if not l.strip(): continue
            self.lines.append(l if l.lstrip().startswith(('.', ';')) or l.rstrip().endswith(':') else '  ' + l.strip())
            I = Ins(l)
            if I.is_vmem(): self.vm += 1
            if I.kind in ('dsr', 'dsw'): self.lg += 1
            if I.opc == 's_waitcnt' and self.track:
                m = re.search(r'vmcnt\((\d+)\)', l)
                if m: self.vm_done = max(self.vm_done, self.vm - int(m.group(1)))
                m = re.search(r'lgkmcnt\((\d+)\)', l)
                if m: self.lg_done = max(self.lg_done, self.lg - int(m.group(1)))
    def vmark(self): return self.vm
    def lmark(self): return self.lg
    def vwait(self, tok):
        if tok <= self.vm_done: return
        n = self.vm - tok
        assert n >= 0
        if n > 63: n = 63;
        self('s_waitcnt vmcnt(%d)' % n)
    def lwait(self, tok):
        if tok <= self.lg_done: return
        n = self.lg - tok
        assert n >= 0
        if n > 15: n = 15
        self('s_waitcnt lgkmcnt(%d)' % n)
    def text(self):
        fixed, n = fix_hazards(self.lines)
        return '\n'.join(fixed) + '\n', n
```

```python
import sys, os, importlib, mkfile
gen2 = importlib.import_module(os.environ.get('GEN', 'gen3'))
def write(path):
    mkfile.write(path, [(None, 256 if (gen2.O.helpers or hasattr(gen2, 'NHELP')) else 224, 256, gen2.LDS_TOTAL)], gen2.kernel_text())
if __name__ == '__main__':
    write(sys.argv[1] if len(sys.argv) > 1 else 'parallel_sum__ssm_conv_h3__dense_activation_mish__prompt.s')
```

```python
import sys, gen
HDR = open('parallel_sum__ssm_conv_h3__dense_activation_mish__prompt.s.ref').read().split('\n')
hdr = []
for l in HDR:
    if l.startswith('; @launch') or l.startswith('; Override launch') or l.startswith('; grid=ceil'): continue
    if not l.startswith(';'): break
    hdr.append(l)
DOC = """;
;
;   tagged 8-byte granules {hi | lo << 16, tag} and {bf16 mean | bf16 std << 16, tag}; they also read w2 once so that it waits in
"""
def write(path, launches, body):
    s = '\n'.join(hdr) + '\n'
    for k, grid, block, lds in launches:
        if k is None: s += f'; @launch grid=({grid},1,1) block=({block},1,1) lds={lds}\n'
        else: s += f'; @launch kernel={k} grid=({grid},1,1) block=({block},1,1) lds={lds}\n'
    s += DOC
    s += '.amdgcn_target "amdgcn-amd-amdhsa--gfx950"\n' + body
    open(path, 'w').write(s)
if __name__ == '__main__':
    write(sys.argv[1], [('p1_kernel', 224, 256, gen.LDS1), ('p2_kernel', 224, 256, gen.LDS2), ('p3_kernel', 224, 256, gen.LDS3)], gen.multi3())
```
